```python
import torch

def _softmax(x, axis=-1):
    return torch.softmax(x, dim=axis)
def _gelu(x):
    return torch.nn.functional.gelu(x, approximate="tanh")
def _silu(x):
    return torch.nn.functional.silu(x)
def _sigmoid(x):
    return torch.sigmoid(x)
def _layernorm(x, axis=-1, eps=1e-5):
    m = x.mean(dim=axis, keepdim=True)
    v = x.var(dim=axis, keepdim=True, unbiased=False)
    return (x - m) / torch.sqrt(v + eps)
def _scatter_add(tgt, idx, src, axis=0):
    return tgt.clone().index_add_(axis, idx, src)
def _segment_sum(src, seg, n):
    out = torch.zeros((n,) + src.shape[1:], dtype=src.dtype)
    return out.index_add_(0, seg, src)
def _pad(x, pw):
    flat = tuple(v for pair in reversed(pw) for v in pair)
    return torch.nn.functional.pad(x, flat)

kernel_name = 'parallel_sum__sliding_block_cached__geglu_ffn__decode'

def setup_inputs():

    _w = (lambda a: (lambda t: t.to(torch.bfloat16) if t.is_floating_point() else t)(torch.as_tensor(a)))
    def _A_setup():
        B, Sq, D = 1, 1, 576
        Hq, Hkv, Sk, Dh = 32, 16, 65536, 128
        assert Hq % Hkv == 0, (Hq, Hkv)
        return {
            "x": _w((lambda *s: torch.randn(*s, dtype=torch.bfloat16) * 0.05)(B, Sq, D)),
            "k_cache": _w((lambda *s: torch.randn(*s, dtype=torch.bfloat16) * 3.2)(B, Hkv, Sk, Dh)),
            "v_cache": _w((lambda *s: torch.randn(*s, dtype=torch.bfloat16) * 1.6)(B, Hkv, Sk, Dh)),
            "wq": _w((lambda *s: torch.randn(*s, dtype=torch.bfloat16) * 3.2)(D, Hq * Dh) * (D ** -0.5)),
            "wo": _w((lambda *s: torch.randn(*s, dtype=torch.bfloat16) * 1.6)(Hq * Dh, D) * ((Hq * Dh) ** -0.5)),
        }
    _A_in = _A_setup()

    def _B_setup():
        B, S, D, F = 1, 1, 576, 4608
        return {
            "x": _w((lambda *s: torch.randn(*s, dtype=torch.bfloat16) * 0.05)(B, S, D)),
            "w_gate": _w((lambda *s: torch.randn(*s, dtype=torch.bfloat16) * 0.05)(D, F)),
            "w_up": _w((lambda *s: torch.randn(*s, dtype=torch.bfloat16) * 0.05)(D, F)),
            "w_down": _w((lambda *s: torch.randn(*s, dtype=torch.bfloat16) * 0.05)(F, D)),
        }
    _B_in = _B_setup()

    return {
        "A_x": _A_in["x"],
        "A_k_cache": _A_in["k_cache"],
        "A_v_cache": _A_in["v_cache"],
        "A_wq": _A_in["wq"],
        "A_wo": _A_in["wo"],
        "B_x": _B_in["x"],
        "B_w_gate": _B_in["w_gate"],
        "B_w_up": _B_in["w_up"],
        "B_w_down": _B_in["w_down"],
    }

def reference(A_x, A_k_cache, A_v_cache, A_wq, A_wo, B_x, B_w_gate, B_w_up, B_w_down):
    def _A_ref(x, k_cache, v_cache, wq, wo):
        B, Sq, D = x.shape
        Hq, Dh = 32, 128
        Hkv, Sk = k_cache.shape[1], k_cache.shape[2]
        W = min(4096, max(256, Sk // 4))
        rep = Hq // Hkv
        q = (lambda x, *d: x.permute(*d))((x @ wq).reshape(B, Sq, Hq, Dh), 0, 2, 1, 3)
        k = (lambda x, n, axis: torch.repeat_interleave(x, n, dim=axis))(k_cache[:, :, Sk - W:, :], rep, axis=1)
        v = (lambda x, n, axis: torch.repeat_interleave(x, n, dim=axis))(v_cache[:, :, Sk - W:, :], rep, axis=1)
        scores = torch.einsum("bhqd,bhkd->bhqk", q, k) * (Dh ** -0.5)
        p = _softmax(scores, axis=-1)
        o = torch.einsum("bhqk,bhkd->bhqd", p, v)
        return (lambda x, *d: x.permute(*d))(o, 0, 2, 1, 3).reshape(B, Sq, Hq * Dh) @ wo

    def _B_ref(x, w_gate, w_up, w_down):
        return (_gelu(x @ w_gate) * (x @ w_up)) @ w_down

    x = A_x
    xn = _layernorm(x, axis=-1)
    return x + _A_ref(xn, A_k_cache, A_v_cache, A_wq, A_wo) + _B_ref(xn, B_w_gate, B_w_up, B_w_down)
```

```python
import re

TRANS = ("v_exp_f32", "v_log_f32", "v_rcp_f32", "v_rsq_f32", "v_sqrt_f32", "v_sin_f32", "v_cos_f32")

def regs(tok):
    tok = tok.strip()
    tok = tok.lstrip("-")
    if tok.startswith("|"): tok = tok.strip("|")
    m = re.fullmatch(r"abs\((.*)\)", tok)
    if m: tok = m.group(1)
    m = re.fullmatch(r"([vsa])(\d+)", tok)
    if m: return {(m.group(1), int(m.group(2)))}
    m = re.fullmatch(r"([vsa])\[(\d+):(\d+)\]", tok)
    if m: return {(m.group(1), i) for i in range(int(m.group(2)), int(m.group(3)) + 1)}
    if tok in ("vcc", "vcc_lo", "vcc_hi"): return {("s", "vcc")}
    if tok in ("exec", "exec_lo", "exec_hi"): return {("s", "exec")}
    if tok == "m0": return {("s", "m0")}
    return set()

def split_ops(rest):
    out, depth, cur = [], 0, ""
    for ch in rest:
        if ch in "[(": depth += 1
        if ch in "])": depth -= 1
        if ch == "," and depth == 0:
            out.append(cur); cur = ""
        else: cur += ch
    if cur.strip(): out.append(cur)
    if out:
        last = out[-1].strip().split()
        out[-1] = last[0] if last else ""
        mods = " ".join(last[1:])
    else: mods = ""
    return [o.strip() for o in out], mods

class I:
    def __init__(self, line):
        self.line = line
        s = line.split(";")[0].strip()
        self.is_inst = bool(s) and not s.endswith(":") and not s.startswith(".")
        self.op = ""; self.w = set(); self.r = set(); self.kind = None
        if not self.is_inst: return
        p = s.split(None, 1)
        self.op = p[0]; ops, mods = split_ops(p[1]) if len(p) > 1 else ([], "")
        self.ops = ops; self.mods = mods
        op = self.op
        R = [regs(o) for o in ops]
        allr = lambda idx: set().union(*[R[i] for i in idx if i < len(R)]) if idx else set()
        n = len(ops)
        self.dpp = ("_dpp" in op) or any(k in mods for k in ("row_", "quad_perm"))
        if op.startswith("v_mfma"):
            self.kind = "mfma"; self.w = R[0]; self.A = R[1]; self.B = R[2]; self.C = R[3] if n > 3 else set()
            self.r = self.A | self.B | self.C
        elif op.startswith("v_permlane"):
            self.kind = "valu"; self.w = R[0] | R[1]; self.r = R[0] | R[1]
        elif op.startswith("v_cmp"):
            self.kind = "valu"; self.w = R[0]; self.r = allr(range(1, n))
        elif op.startswith("v_"):
            self.kind = "valu"; self.w = set(R[0]); self.r = allr(range(1, n))
            if op.startswith(("v_fmac", "v_dot2c", "v_writelane")) or (self.dpp and ("bank_mask:0xf" not in mods or "row_mask:0xf" not in mods)): self.r |= R[0]
            if "_co_" in op: self.w |= R[1]
            self.dppsrc = R[1] if self.dpp and n > 1 else set()
        elif op.startswith(("buffer_load", "global_load")):
            self.kind = "vmem"
            if "lds" in mods.split() or "_lds_" in op: self.r = allr(range(0, n))
            else: self.w = R[0]; self.r = allr(range(1, n))
        elif op.startswith(("buffer_store", "global_store", "buffer_atomic", "global_atomic")):
            self.kind = "vmem"; self.r = allr(range(0, n))
            self.wide = ("x3" in op or "x4" in op)
            self.data = (R[0] if op.startswith("buffer") else R[1])
        elif op.startswith("ds_"):
            self.kind = "ds"
            if op.startswith("ds_read") or "_rtn" in op or "permute" in op or "swizzle" in op:
                self.w = R[0]; self.r = allr(range(1, n))
            else: self.r = allr(range(0, n))
        elif op.startswith("s_"):
            self.kind = "salu"
            if op.startswith(("s_cmp", "s_cbranch", "s_branch", "s_waitcnt", "s_nop", "s_barrier", "s_sleep", "s_setprio", "s_endpgm", "s_bitcmp")):
                self.r = allr(range(0, n))
            else:
                self.w = set(R[0]) if n else set(); self.r = allr(range(1, n))
    def states(self):
        if self.op == "s_nop": return int(self.ops[0], 0) + 1
        return 1

def need(p, c):
    n = 0
    pv = {x for x in p.w if x[0] in "va"}; ps = {x for x in p.w if x[0] == "s"}
    if p.kind == "valu":
        isdot = p.op.startswith("v_dot")
        if c.kind == "valu" and c.dpp and (pv & c.dppsrc): n = max(n, 2)
        if c.op.startswith("v_permlane") and (pv & c.r): n = max(n, 2)
        if c.kind == "mfma" and (pv & c.r): n = max(n, 2)
        if c.op.startswith(("v_readlane", "v_readfirstlane")) and (pv & c.r): n = max(n, 1)
        if p.op.startswith(TRANS) and c.kind in ("valu", "mfma") and not c.op.startswith(TRANS) and (pv & c.r): n = max(n, 1)
        if c.kind == "valu" and (ps & c.r): n = max(n, 4 if c.op.startswith(("v_readlane", "v_writelane")) else 2)
        if c.kind == "valu" and c.op.startswith("v_cndmask") and ("s", "vcc") in ps and len(c.ops) < 4: n = max(n, 2)
        if c.kind == "vmem" and (ps & c.r): n = max(n, 5)
        if "sdwa" in p.op and c.kind == "valu" and (pv & (c.r | c.w)): n = max(n, 1)
        if isdot:
            same = c.op.replace("_e32", "") == p.op.replace("_e32", "")
            if same:
                ab = set().union(*[regs(o) for o in c.ops[1:3]])
                if pv & ab: n = max(n, 3)
            elif pv & (c.r | c.w): n = max(n, 3)
    if p.kind == "mfma":
        assert "16x16x32" in p.op
        if c.kind == "mfma":
            if p.w & (c.A | c.B): n = max(n, 8)
            if (p.w & c.C) and p.w != c.C: n = max(n, 6)
        elif c.kind in ("valu", "vmem", "ds") and (p.w & (c.r | c.w)): n = max(n, 8)
        if c.kind == "valu" and (p.C & c.w): n = max(n, 3)
    if p.kind == "vmem" and getattr(p, "wide", False) and (p.data & c.w): n = max(n, 2 if c.kind == "valu" else 1)
    if p.kind == "salu" and ("s", "m0") in p.w and (c.kind == "vmem" and ("lds" in c.mods.split() or "_lds_" in c.op)): n = max(n, 1)
    return n

def fix(text, verbose=False):
    out = []; hist = []
    added = 0
    for line in text.split("\n"):
        c = I(line)
        if not c.is_inst:
            out.append(line); continue
        dist = 0; req = 0
        for p in reversed(hist):
            k = need(p, c) - dist
            if k > req: req = k
            dist += p.states()
            if dist >= 12: break
        if req > 0:
            nop = I(f"    s_nop {req-1}")
            out.append(nop.line); hist.append(nop); added += req
        out.append(line); hist.append(c)
        if c.op in ("s_branch", "s_endpgm"): hist = []
        hist = hist[-16:]
    if verbose: print("nops added (states):", added)
    return "\n".join(out)
```

```python
import sys, os
sys.path.insert(0, os.path.dirname(os.path.abspath(__file__)))
import hz

NAME = "parallel_sum__sliding_block_cached__geglu_ffn__decode"

class A:
    def __init__(self): self.l = []
    def __call__(self, s):
        for x in s.strip("\n").split("\n"):
            x = x.strip()
            if not x: continue
            self.l.append(x if x.split(";")[0].rstrip().endswith(":") else "    " + x)
    def text(self): return "\n".join(self.l) + "\n"

E_OFF = 0
P_OFF = 0x1000
O_OFF = P_OFF + 8 * 26 * 8 * 256
F_OFF = O_OFF + 256 * 1152
WS_END = F_OFF + 18 * 256 * 128
ST_OFF = 0x400000
CTRL = 0
LSL = 64; QL = 128; XN = 640; FP = 2944; PVP = 4096; LDS_BYTES = 12288
SPIN_MAX = 1 << 17

def gen(stamps=False, stP=" sc1", stO=" sc1", stF=" sc1", ldG=" sc1", slp1=24, slp2=0, nt=" nt", first=4):
    a = A()
    nst = [0]
    def stamp(i):
        if stamps: a(f"s_memrealtime s[{64+2*i}:{65+2*i}]")
    def masks():
        a("""
v_and_b32 v4, 1, v0
v_lshlrev_b32 v4, 4, v4
v_mov_b32 v5, 0xffff
v_lshlrev_b32 v3, v4, v5
v_bfe_u32 v2, v0, 1, 2
""")
        for r in range(4):
            a(f"v_cmp_eq_u32 vcc, {r}, v2")
            a(f"v_cndmask_b32 v{4+r}, 0, v3, vcc")
    def consts():
        a("""
s_mov_b32 s44, 0x07060500
s_mov_b32 s45, 0x07060501
s_mov_b32 s46, 0x07060502
s_mov_b32 s47, 0x07060503
s_mov_b32 s48, 0xffffff00
s_mov_b32 s49, 0x0c0c0400
s_mov_b32 s50, 0x04000c0c
""")
    def tag_ready(vT):
        a(f"s_add_u32 s40, s40, 0x9e3779b9\nv_mov_b32 v{vT}, s40")
    def put_tag(base, vT):
        for r in range(4): a(f"v_perm_b32 v{base+r}, v{base+r}, v{vT}, s{44+r}")
    def chk(base, t0, t1, first):
        a(f"""
v_perm_b32 v{t0}, v{base+1}, v{base}, s49
v_perm_b32 v{t1}, v{base+3}, v{base+2}, s50
v_or_b32 v{t0}, v{t0}, v{t1}
v_cmp_eq_u32 vcc, s40, v{t0}
""")
        a("s_mov_b64 s[52:53], vcc" if first else "s_and_b64 s[52:53], s[52:53], vcc")
    def unmask(base, n=4):
        for r in range(n): a(f"v_and_b32 v{base+r}, s48, v{base+r}")
    def rscatter(bases):
        for b in bases: a(f"v_permlane32_swap_b32 v{b}, v{b+2}\nv_permlane32_swap_b32 v{b+1}, v{b+3}")
        for b in bases: a(f"v_add_f32 v{b}, v{b}, v{b+2}\nv_add_f32 v{b+1}, v{b+1}, v{b+3}")
        for b in bases: a(f"v_permlane16_swap_b32 v{b}, v{b+1}")
        for b in bases: a(f"v_add_f32 v{b}, v{b}, v{b+1}")
    def allred_hi(v, t, op):
        a(f"""
v_mov_b32 v{t}, v{v}
v_permlane16_swap_b32 v{v}, v{t}
{op} v{v}, v{v}, v{t}
v_mov_b32 v{t}, v{v}
v_permlane32_swap_b32 v{v}, v{t}
{op} v{v}, v{v}, v{t}
""")
    FULL = "row_mask:0xf bank_mask:0xf"
    def lds_spin(label, off, val, vz, vt):
        a(f"""
s_mov_b32 s54, 0
{label}:
ds_read_b32 v{vt}, v{vz} offset:{off}
s_add_u32 s54, s54, 1
s_waitcnt lgkmcnt(0)
v_readfirstlane_b32 s55, v{vt}
s_cmp_ge_u32 s55, {val}
s_cbranch_scc1 {label}_ok
s_sleep 1
s_cmp_lt_u32 s54, {SPIN_MAX}
s_cbranch_scc1 {label}
{label}_ok:
""")

    a('L_start:')
    stamp(0)
    a("""
s_load_dwordx16 s[8:23], s[0:1], 0
s_load_dwordx8 s[24:31], s[0:1], 64
v_lshrrev_b32 v1, 6, v0
s_cmp_ge_u32 s2, 256
s_cbranch_scc1 L_end
v_readfirstlane_b32 s3, v1
v_and_b32 v0, 63, v0
s_and_b32 s4, s2, 7
s_lshr_b32 s5, s2, 3
s_cmp_ge_u32 s3, 8
s_cbranch_scc1 L_kv
s_and_b32 s6, s5, 3
s_lshr_b32 s7, s5, 2
s_mul_i32 s32, s6, 13
s_lshr_b32 s32, s32, 1
s_add_u32 s32, s32, s3
s_and_b32 s33, s5, 1
s_add_u32 s34, s33, 6
s_cmp_ge_u32 s3, s34
s_cbranch_scc1 L_notask
s_cmp_lt_u32 s32, 8
s_cselect_b32 s35, 8, 9
s_cselect_b32 s36, 0, 8
s_cmp_lt_u32 s32, 17
s_cselect_b32 s36, s36, 17
s_lshl_b32 s35, s35, 7
s_sub_u32 s36, s32, s36
s_mul_i32 s37, s7, 576
s_add_u32 s37, s37, s4
s_mul_i32 s37, s37, s35
s_lshl_b32 s36, s36, 7
s_add_u32 s37, s37, s36
s_lshl_b32 s38, s35, 6
v_and_b32 v1, 56, v0
v_and_b32 v2, 7, v0
v_mul_u32_u24 v1, s35, v1
v_lshl_add_u32 v2, v2, 4, s37
v_add_u32 v8, v1, v2
""")
    for n in range(1, 9): a(f"v_add_u32 v{8+n}, s38, v{7+n}")
    a("""
s_cmp_lt_u32 s32, 17
s_waitcnt lgkmcnt(0)
s_cselect_b64 s[42:43], s[20:21], s[22:23]
s_cmp_lt_u32 s32, 8
s_cselect_b64 s[42:43], s[14:15], s[42:43]
""")
    WD = 64
    AO = 20
    for n in range(9):
        if n == first: a("s_barrier")
        a(f"global_load_dwordx4 v[{WD+4*n}:{WD+4*n+3}], v{8+n}, s[42:43]{nt}")
    stamp(1)
    a("s_load_dword s40, s[30:31], %d" % E_OFF)
    masks(); consts()
    a(f"""
v_mov_b32 v1, 0
v_lshrrev_b32 v2, 3, v0
s_mul_i32 s36, s7, 288
v_lshl_add_u32 v2, v2, 2, s36
""")
    lds_spin("L_sx", CTRL + 24, 1, 1, 3)
    for n in range(9): a(f"ds_read_b32 v{8+n}, v2 offset:{XN+32*n}")
    tag_ready(17)
    a(f"""
s_mul_i32 s36, s4, 26
s_add_u32 s36, s36, s32
s_lshl_b32 s36, s36, 3
s_add_u32 s36, s36, s7
s_lshl_b32 s36, s36, 8
s_add_u32 s36, s36, {P_OFF}
v_and_b32 v2, 7, v0
v_lshrrev_b32 v3, 4, v0
v_lshl_add_u32 v2, v2, 1, v3
v_lshl_add_u32 v18, v2, 4, s36
s_movk_i32 s41, 0x80
s_waitcnt lgkmcnt(0)
""")
    for n in range(9):
        for r in range(4): a(f"v_and_b32 v{AO+4*n+r}, v{8+n}, v{4+r}")
    for n in range(9):
        a(f"s_waitcnt vmcnt({8-n})")
        a(f"v_mfma_f32_16x16x32_bf16 v[56:59], v[{AO+4*n}:{AO+4*n+3}], v[{WD+4*n}:{WD+4*n+3}], {'0' if n == 0 else 'v[56:59]'}")
    for r in range(4): a(f"v_mov_b32 v{60+r}, v{56+r}")
    for r in range(4): a(f"v_permlane32_swap_b32 v{56+r}, v{60+r}")
    for r in range(4): a(f"v_add_f32_dpp v{56+r}, v{60+r}, v{56+r} row_ror:8 {FULL}")
    for r in range(4): a(f"v_add_u32 v{56+r}, s41, v{56+r}")
    put_tag(56, 17)
    a(f"""
s_mov_b64 exec, 0x00ff00ff
global_store_dwordx4 v18, v[56:59], s[30:31]{stP}
v_mov_b32 v2, 1
s_mov_b64 exec, 1
ds_add_u32 v1, v2 offset:{CTRL+28}
s_mov_b64 exec, -1
""")
    stamp(2)
    a("""
s_cmp_ge_u32 s3, 5
s_cbranch_scc1 L_helper
""")
    a(f"""
s_lshr_b32 s6, s5, 1
s_mul_i32 s6, s6, 9
s_mul_i32 s7, s33, 5
s_add_u32 s6, s6, s7
s_sub_u32 s7, 4, s33
v_and_b32 v2, 7, v0
v_min_u32 v2, s7, v2
v_add_u32 v2, s6, v2
v_lshrrev_b32 v3, 4, v2
v_and_b32 v2, 15, v2
v_lshlrev_b32 v3, 11, v3
v_lshl_add_u32 v2, v2, 4, v3
v_lshrrev_b32 v3, 3, v0
v_lshl_add_u32 v2, v3, 8, v2
s_mul_i32 s36, s4, {26*2048}
s_add_u32 s36, s36, {P_OFF + 8*2048}
v_add_u32 v8, s36, v2
v_add_u32 v9, {9*2048}, v8
s_mul_i32 s36, s4, 144
s_add_u32 s36, s36, s6
s_mul_i32 s36, s36, 4608
s_add_u32 s56, s24, s36
s_addc_u32 s57, s25, 0
s_add_u32 s7, s7, 1
s_mul_i32 s58, s7, 4608
s_mov_b32 s59, 0x20000
s_lshl_b32 s36, s4, 5
s_add_u32 s36, s36, s5
s_mul_i32 s37, s36, 18432
s_add_u32 s60, s16, s37
s_addc_u32 s61, s17, 0
s_movk_i32 s62, 0x4800
s_mov_b32 s63, 0x20000
v_lshrrev_b32 v2, 4, v0
v_mul_u32_u24 v2, 1152, v2
v_and_b32 v3, 15, v0
v_lshl_add_u32 v2, v3, 4, v2
s_lshl_b32 s37, s3, 8
v_add_u32 v10, s37, v2
v_lshl_add_u32 v3, v3, 4, s37
v_cmp_gt_u32 vcc, 1152, v3
v_mov_b32 v2, 0x10000000
v_cndmask_b32 v10, v2, v10, vcc
s_mov_b32 s34, vcc_lo
s_mov_b32 s35, 0
s_and_b32 s37, s36, 0xfffffff0
s_mul_i32 s37, s37, 1152
s_add_u32 s37, s37, {O_OFF}
s_and_b32 s38, s5, 15
s_lshl_b32 s39, s38, 6
s_add_u32 s39, s39, s37
v_lshrrev_b32 v2, 2, v0
v_mul_u32_u24 v2, 1152, v2
v_and_b32 v3, 3, v0
v_lshl_add_u32 v3, v3, 4, v2
v_add_u32 v11, s39, v3
s_lshr_b32 s38, s38, 3
s_lshl_b32 s38, s38, 4
s_add_u32 s38, s38, s37
s_add_u32 s38, s38, 1024
v_add_u32 v12, s38, v2
v_bfe_u32 v2, v0, 2, 2
v_lshlrev_b32 v2, 15, v2
v_and_b32 v3, 3, v0
v_lshl_add_u32 v2, v3, 5, v2
v_and_b32 v3, 16, v0
v_add_u32 v2, v2, v3
s_lshl_b32 s37, s3, 17
s_lshl_b32 s38, s2, 7
s_add_u32 s37, s37, s38
s_add_u32 s37, s37, {F_OFF}
v_add_u32 v13, s37, v2
s_movk_i32 s36, 4608
s_movk_i32 s37, 9216
s_movk_i32 s38, 13824
s_movk_i32 s39, 18432
s_mov_b32 s54, 0
""")
    if slp1: a(f"s_sleep {slp1}")
    a(f"""
L_hg:
global_load_dwordx4 v[20:23], v8, s[30:31]{ldG}
global_load_dwordx4 v[24:27], v9, s[30:31]{ldG}
s_add_u32 s54, s54, 1
s_waitcnt vmcnt(0)
""")
    chk(20, 2, 3, True); chk(24, 2, 3, False)
    a(f"""
s_cmp_eq_u64 s[52:53], -1
s_cbranch_scc1 L_hg_ok
s_cmp_lt_u32 s54, {SPIN_MAX}
s_cbranch_scc1 L_hg
L_hg_ok:
""")
    stamp(3)
    unmask(20, 8)
    rscatter([20, 24])
    a(f"""
v_add_f32_dpp v20, v20, v20 row_ror:8 {FULL}
v_add_f32_dpp v24, v24, v24 row_ror:8 {FULL}
v_cvt_pk_bf16_f32 v20, 0, v20
v_cvt_pk_bf16_f32 v24, 0, v24
v_mul_f32 v21, v20, v20
v_mul_f32 v21, v21, v20
v_mov_b32 v22, 0x3d372713
v_fma_f32 v21, v21, v22, v20
v_mul_f32 v21, 0xc0135761, v21
v_exp_f32 v21, v21
v_add_f32 v21, 1.0, v21
v_rcp_f32 v21, v21
v_mul_f32 v21, v20, v21
v_cvt_pk_bf16_f32 v21, 0, v21
v_mul_f32 v21, v21, v24
v_cvt_pk_bf16_f32 v14, v21, v21
""")
    for n in range(5):
        for r in range(4): a(f"v_and_b32_dpp v{20+4*n+r}, v14, v{4+r} row_newbcast:{n} {FULL}")
    lds_spin("L_skv", CTRL + 20, 8, 1, 3)
    stamp(4)
    so = ["0", "s36", "s37", "s38", "s39"]
    for n in range(5): a(f"buffer_load_dwordx4 v[{WD+4*n}:{WD+4*n+3}], v10, s[56:59], {so[n]} offen{nt}")
    for n in range(4): a(f"buffer_load_dwordx4 v[{WD+20+4*n}:{WD+23+4*n}], v10, s[60:63], {so[n]} offen{nt}")
    stamp(5)
    for n in range(5):
        a(f"s_waitcnt vmcnt({8-n})")
        a(f"v_mfma_f32_16x16x32_bf16 v[56:59], v[{20+4*n}:{23+4*n}], v[{WD+4*n}:{WD+4*n+3}], {'0' if n == 0 else 'v[56:59]'}")
    a(f"""
s_mov_b32 s54, 0
L_og:
global_load_dwordx4 v[44:47], v12, s[30:31]{ldG}
global_load_dwordx4 v[40:43], v11, s[30:31]{ldG}
s_add_u32 s54, s54, 1
s_waitcnt vmcnt(0)
""")
    chk(44, 2, 3, True); chk(40, 15, 16, False)
    a(f"""
s_cmp_eq_u64 s[52:53], -1
s_cbranch_scc1 L_og_ok
s_cmp_lt_u32 s54, {SPIN_MAX}
s_cbranch_scc1 L_og
L_og_ok:
""")
    stamp(6)
    unmask(44, 2)
    a(f"""
v_max_f32_dpp v46, v44, v44 row_ror:4 {FULL}
""")
    unmask(40, 4)
    a(f"v_max_f32_dpp v46, v46, v46 row_ror:8 {FULL}")
    allred_hi(46, 47, "v_max_f32")
    a("""
v_sub_f32 v44, v44, v46
v_mul_f32 v44, 0x3fb8aa3b, v44
v_exp_f32 v44, v44
v_mul_f32 v45, v45, v44
""")
    for r in range(4): a(f"v_mul_f32 v{40+r}, v{40+r}, v44")
    a(f"v_add_f32_dpp v45, v45, v45 row_ror:4 {FULL}")
    rscatter([40])
    a(f"v_add_f32_dpp v45, v45, v45 row_ror:8 {FULL}")
    a(f"v_add_f32_dpp v40, v40, v40 row_ror:4 {FULL}")
    allred_hi(45, 47, "v_add_f32")
    a(f"""
v_add_f32_dpp v40, v40, v40 row_ror:8 {FULL}
v_rcp_f32 v45, v45
v_mul_f32 v40, v40, v45
v_cvt_pk_bf16_f32 v40, v40, v40
""")
    for n in range(4):
        for r in range(4): a(f"v_and_b32_dpp v{20+4*n+r}, v40, v{4+r} quad_perm:[{n},{n},{n},{n}] {FULL}")
        if n >= 1:
            m = n - 1
            a(f"v_mfma_f32_16x16x32_bf16 v[56:59], v[{20+4*m}:{23+4*m}], v[{WD+20+4*m}:{WD+23+4*m}], v[56:59]")
    a(f"v_mfma_f32_16x16x32_bf16 v[56:59], v[32:35], v[{WD+32}:{WD+35}], v[56:59]")
    put_tag(56, 17)
    a(f"""
s_mov_b64 exec, s[34:35]
global_store_dwordx4 v13, v[56:59], s[30:31]{stF}
s_mov_b64 exec, -1
""")
    stamp(7)
    a("s_branch L_fin")

    a(f"""
L_notask:
s_cmp_eq_u32 s3, 7
s_cbranch_scc1 L_ln
s_barrier
s_waitcnt lgkmcnt(0)
s_load_dword s40, s[30:31], {E_OFF}
s_branch L_h0
L_ln:
s_getpc_b64 s[34:35]
L_pc:
s_lshl_b32 s36, s6, 4
v_add_u32 v2, s36, v0
v_lshlrev_b32 v2, 7, v2
v_min_u32 v2, L_end-L_start, v2
s_sub_u32 s34, s34, L_pc-L_start
s_subb_u32 s35, s35, 0
v_mov_b32 v3, 0xff800000
v_cmp_gt_u32 vcc, 2, v0
v_lshlrev_b32 v1, 2, v0
v_cndmask_b32 v3, 0, v3, vcc
s_mov_b64 exec, 0xffff
global_load_dword v19, v2, s[34:35]
ds_write_b32 v1, v3
s_mov_b64 exec, -1
v_lshlrev_b32 v1, 4, v0
v_mov_b32 v12, 0
v_mov_b32 v13, 0
v_mov_b32 v14, 0
v_mov_b32 v15, 0
s_waitcnt lgkmcnt(0)
global_load_dwordx4 v[8:11], v1, s[8:9]
s_mov_b64 exec, 0xff
global_load_dwordx4 v[12:15], v1, s[8:9] offset:1024
s_mov_b64 exec, -1
s_barrier
s_load_dword s40, s[30:31], {E_OFF}
s_mov_b32 s41, 0xffff0000
s_waitcnt vmcnt(0)
""")
    stamp(1)
    for r in range(8):
        a(f"v_lshlrev_b32 v{20+2*r}, 16, v{8+r}")
        a(f"v_and_b32 v{21+2*r}, s41, v{8+r}")
    def allred64(v, t):
        for sh in (1, 2, 4, 8): a(f"v_add_f32_dpp v{v}, v{v}, v{v} row_ror:{sh} {FULL}")
        allred_hi(v, t, "v_add_f32")
    a("v_add_f32 v2, v20, v21\nv_add_f32 v3, v22, v23")
    for r in range(2, 8): a(f"v_add_f32 v2, v2, v{20+2*r}\nv_add_f32 v3, v3, v{21+2*r}")
    a("v_add_f32 v2, v2, v3")
    allred64(2, 3)
    a("v_mul_f32 v2, 0x3ae38e39, v2      ; mean (1/576)")
    for r in range(16): a(f"v_sub_f32 v{40+r}, v{20+r}, v2")
    a("v_mul_f32 v3, v40, v40\nv_mul_f32 v16, v41, v41")
    for r in range(1, 4): a(f"v_fmac_f32 v3, v{40+2*r}, v{40+2*r}\nv_fmac_f32 v16, v{41+2*r}, v{41+2*r}")
    a("s_mov_b64 exec, 0xff")
    for r in range(4, 8): a(f"v_fmac_f32 v3, v{40+2*r}, v{40+2*r}\nv_fmac_f32 v16, v{41+2*r}, v{41+2*r}")
    a("s_mov_b64 exec, -1")
    a("v_add_f32 v3, v3, v16")
    allred64(3, 16)
    a("""
v_mul_f32 v3, 0x3ae38e39, v3
v_cvt_pk_bf16_f32 v3, 0, v3
v_add_f32 v3, 0x3727c5ac, v3
v_cvt_pk_bf16_f32 v3, 0, v3
v_sqrt_f32 v3, v3
v_cvt_pk_bf16_f32 v2, 0, v2
v_cvt_pk_bf16_f32 v3, 0, v3
v_rcp_f32 v3, v3
""")
    for r in range(16): a(f"v_sub_f32 v{20+r}, v{20+r}, v2")
    for r in range(16): a(f"v_cvt_pk_bf16_f32 v{20+r}, 0, v{20+r}")
    for r in range(16): a(f"v_mul_f32 v{20+r}, v{20+r}, v3")
    for r in range(16): a(f"v_cvt_pk_bf16_f32 v{20+r}, v{20+r}, v{20+r}")
    a(f"""
v_lshlrev_b32 v2, 5, v0
v_mov_b32 v1, 0
v_mov_b32 v3, 1
ds_write_b128 v2, v[20:23] offset:{XN}
ds_write_b128 v2, v[24:27] offset:{XN+16}
s_mov_b64 exec, 0xff
ds_write_b128 v2, v[28:31] offset:{XN+2048}
ds_write_b128 v2, v[32:35] offset:{XN+2064}
s_mov_b64 exec, 1
ds_write_b32 v1, v3 offset:{CTRL+24}
s_mov_b64 exec, -1
""")
    stamp(2)
    a("L_h0:")
    consts()
    a("s_waitcnt lgkmcnt(0)")
    tag_ready(17)
    if slp2: a(f"s_sleep {slp2}")
    a(f"""
L_helper:
s_cmp_eq_u32 s3, 5
s_cbranch_scc1 L_fin
s_sub_u32 s6, s3, 6
s_lshr_b32 s7, s5, 4
s_lshl_b32 s7, s7, 1
s_add_u32 s7, s7, s6
s_lshl_b32 s7, s7, 12
s_mul_i32 s36, s4, {26*2048}
s_add_u32 s36, s36, s7
s_add_u32 s36, s36, {P_OFF}
v_lshl_add_u32 v8, v0, 4, s36
v_and_b32 v2, 15, v0
v_lshrrev_b32 v3, 4, v0
v_lshl_add_u32 v2, v2, 2, v3
s_lshl_b32 s6, s6, 8
v_lshl_add_u32 v9, v2, 1, s6
v_mov_b32 v1, 0
v_mov_b32 v10, 1
""")
    lds_spin("L_sp", CTRL + 28, 6, 1, 3)
    a("s_mov_b32 s54, 0")
    if slp1: a(f"s_sleep {slp1}")
    a("L_qg:")
    for n in range(4): a(f"global_load_dwordx4 v[{20+4*n}:{23+4*n}], v8, s[30:31] offset:{1024*n}{ldG}")
    a("s_add_u32 s54, s54, 1\ns_waitcnt vmcnt(0)")
    for n in range(4): chk(20 + 4*n, 2, 3, n == 0)
    a(f"""
s_cmp_eq_u64 s[52:53], -1
s_cbranch_scc1 L_qg_ok
s_cmp_lt_u32 s54, {SPIN_MAX}
s_cbranch_scc1 L_qg
L_qg_ok:
""")
    stamp(3)
    unmask(20, 16)
    for r in range(4): a(f"v_add_f32 v{20+r}, v{20+r}, v{24+r}\nv_add_f32 v{28+r}, v{28+r}, v{32+r}")
    rscatter([20, 28])
    a(f"""
v_cvt_pk_bf16_f32 v20, v20, v28
ds_write_b16 v9, v20 offset:{QL}
ds_write_b16_d16_hi v9, v20 offset:{QL+128}
s_mov_b64 exec, 1
ds_add_u32 v1, v10 offset:{CTRL+16}
s_mov_b64 exec, -1
""")
    stamp(4)
    a("s_branch L_fin")

    KD, VD = 32, 64
    a(f"""
L_kv:
s_sub_u32 s3, s3, 8
s_lshl_b32 s6, s4, 5
s_add_u32 s6, s6, s5
s_lshr_b32 s7, s6, 4
s_lshl_b32 s7, s7, 24
s_and_b32 s32, s5, 15
s_lshl_b32 s32, s32, 16
s_add_u32 s7, s7, s32
s_lshl_b32 s32, s3, 13
s_add_u32 s7, s7, s32
s_add_u32 s7, s7, 0xf01000
v_lshl_add_u32 v1, v0, 4, s7
s_barrier
s_waitcnt lgkmcnt(0)
""")
    for n in range(8): a(f"global_load_dwordx4 v[{KD+4*n}:{KD+4*n+3}], v1, s[10:11] offset:{1024*n-4096}{nt}")
    for n in range(8): a(f"global_load_dwordx4 v[{VD+4*n}:{VD+4*n+3}], v1, s[12:13] offset:{1024*n-4096}{nt}")
    a(f"""
v_mov_b32 v1, 0
v_mov_b32 v100, 1
s_mov_b64 exec, 1
ds_add_u32 v1, v100 offset:{CTRL+20}
s_mov_b64 exec, -1
""")
    stamp(1)
    a("s_load_dword s40, s[30:31], %d" % E_OFF)
    masks(); consts()
    for n in range(16): a(f"v_mov_b32 v{16+n}, 0")
    a(f"""
v_and_b32 v101, 15, v0
v_lshlrev_b32 v101, 4, v101
v_bfe_u32 v102, v0, 3, 1
v_lshlrev_b32 v103, 2, v102
s_lshl_b32 s32, s3, 2
v_lshl_add_u32 v104, v102, 5, s32
s_lshl_b32 s32, s3, 10
v_lshl_add_u32 v105, v0, 4, s32
v_and_b32 v2, 15, v0
v_lshlrev_b32 v2, 5, v2
v_and_b32 v3, 16, v0
v_add_u32 v2, v2, v3
v_and_b32 v3, 32, v0
v_lshl_add_u32 v2, v3, 4, v2
s_mul_i32 s32, s6, 1152
s_add_u32 s32, s32, {O_OFF}
v_add_u32 v106, s32, v2
v_lshl_add_u32 v107, v0, 4, s32
s_mov_b32 s34, 0xff00ff00
s_mov_b32 s35, 0xff00ff00
s_mov_b32 s36, 0x01010101
s_mov_b32 s37, 0x01010101
s_mov_b32 s38, 0x3db504f3
s_mov_b32 s39, 0x3fb8aa3b
""")
    lds_spin("L_sq", CTRL + 16, 2, 1, 3)
    stamp(2)
    a(f"""
ds_read_b128 v[8:11], v101 offset:{QL}
ds_read_b128 v[12:15], v101 offset:{QL+256}
""")
    tag_ready(108)
    a("s_waitcnt lgkmcnt(0)")
    for n in range(8):
        a(f"s_waitcnt vmcnt({15-n})")
        for r in range(4):
            a(f"v_dot2c_f32_bf16 v{16+n}, v{KD+4*n+r}, v{8+r}")
            a(f"v_dot2c_f32_bf16 v{24+n}, v{KD+4*n+r}, v{12+r}")
    for n in range(8): a(f"v_add_f32_dpp v{16+n}, v{16+n}, v{16+n} row_ror:8 row_mask:0xf bank_mask:0x3")
    for n in range(8): a(f"v_add_f32_dpp v{16+n}, v{24+n}, v{24+n} row_ror:8 row_mask:0xf bank_mask:0xc")
    for n in range(8): a(f"v_add_f32_dpp v{16+n}, v{16+n}, v{16+n} row_half_mirror {FULL}")
    for n in range(8): a(f"v_add_f32_dpp v{16+n}, v{16+n}, v{16+n} quad_perm:[1,0,3,2] {FULL}")
    for n in range(8): a(f"v_add_f32_dpp v{16+n}, v{16+n}, v{16+n} quad_perm:[2,3,0,1] {FULL}")
    for n in range(8): a(f"v_cvt_pk_bf16_f32 v{16+n}, 0, v{16+n}")
    for n in range(8): a(f"v_mul_f32 v{16+n}, s38, v{16+n}")
    for n in range(8): a(f"v_cvt_pk_bf16_f32 v{16+n}, 0, v{16+n}")
    a(f"""
v_max3_f32 v24, v16, v17, v18
v_max3_f32 v25, v19, v20, v21
v_max3_f32 v24, v24, v22, v23
v_max_f32 v24, v24, v25
s_mov_b64 exec, s[36:37]
ds_max_f32 v103, v24 offset:{CTRL}
s_mov_b64 exec, 1
ds_add_u32 v1, v100 offset:{CTRL+8}
s_mov_b64 exec, -1
s_mov_b32 s54, 0
L_sm:
ds_read_b128 v[28:31], v1 offset:{CTRL}
s_add_u32 s54, s54, 1
s_waitcnt lgkmcnt(0)
v_readfirstlane_b32 s55, v30
s_cmp_ge_u32 s55, 8
s_cbranch_scc1 L_sm_ok
s_sleep 1
s_cmp_lt_u32 s54, {SPIN_MAX}
s_cbranch_scc1 L_sm
L_sm_ok:
""")
    stamp(3)
    a("v_cndmask_b32 v24, v28, v29, s[34:35]")
    for n in range(8): a(f"v_sub_f32 v{16+n}, v{16+n}, v24")
    for n in range(8): a(f"v_mul_f32 v{16+n}, s39, v{16+n}")
    for n in range(8): a(f"v_exp_f32 v{16+n}, v{16+n}")
    a("""
v_add_f32 v24, v16, v17
v_add_f32 v25, v18, v19
v_add_f32 v26, v20, v21
v_add_f32 v27, v22, v23
""")
    for n in range(8): a(f"v_cvt_pk_bf16_f32 v{16+n}, v{16+n}, v{16+n}")
    a("v_add_f32 v24, v24, v25\nv_add_f32 v26, v26, v27")
    for n in range(8):
        for r in range(4): a(f"v_and_b32 v{KD+4*n+r}, v{16+n}, v{4+r}")
    a("v_add_f32 v24, v24, v26")
    allred_hi(24, 25, "v_add_f32")
    a(f"ds_write_b32 v104, v24 offset:{LSL}")
    stamp(4)
    for n in range(8):
        a(f"s_waitcnt vmcnt({7-n})")
        a(f"v_mfma_f32_16x16x32_bf16 v[96:99], v[{KD+4*n}:{KD+4*n+3}], v[{VD+4*n}:{VD+4*n+3}], {'0' if n == 0 else 'v[96:99]'}")
    stamp(5)
    a(f"""
ds_write_b128 v105, v[96:99] offset:{PVP}
s_mov_b64 exec, 1
ds_add_rtn_u32 v2, v1, v100 offset:{CTRL+32}
s_mov_b64 exec, -1
v_lshlrev_b32 v3, 4, v0
v_and_b32 v101, 1, v0
v_lshlrev_b32 v102, 5, v101
v_cmp_eq_u32 vcc, 1, v101
s_waitcnt lgkmcnt(0)
v_readfirstlane_b32 s55, v2
s_cmp_eq_u32 s55, 7
s_cbranch_scc0 L_notlast
""")
    for n in range(8): a(f"ds_read_b128 v[{32+4*n}:{35+4*n}], v3 offset:{PVP+1024*n}")
    a(f"""
ds_read_b128 v[16:19], v102 offset:{LSL}
ds_read_b128 v[20:23], v102 offset:{LSL+16}
v_cndmask_b32 v24, v28, v29, vcc
v_mov_b32 v26, 0
v_mov_b32 v27, 0
""")
    w = [8, 6, 4, 2]
    for p in range(4):
        a(f"s_waitcnt lgkmcnt({0 if stamps else w[p]})")
        for r in range(4): a(f"v_add_f32 v{32+8*p+r}, v{32+8*p+r}, v{36+8*p+r}")
        if p in (1, 3):
            for r in range(4): a(f"v_add_f32 v{32+8*(p-1)+r}, v{32+8*(p-1)+r}, v{32+8*p+r}")
    for r in range(4): a(f"v_add_f32 v{32+r}, v{32+r}, v{48+r}")
    put_tag(32, 108)
    a(f"""
global_store_dwordx4 v106, v[32:35], s[30:31]{stO}
s_waitcnt lgkmcnt(0)
v_add_f32 v16, v16, v17
v_add_f32 v18, v18, v19
v_add_f32 v20, v20, v21
v_add_f32 v22, v22, v23
v_add_f32 v16, v16, v18
v_add_f32 v20, v20, v22
v_add_f32 v25, v16, v20
""")
    put_tag(24, 108)
    a(f"""
s_mov_b64 exec, 0xff
global_store_dwordx4 v107, v[24:27], s[30:31] offset:1024{stO}
s_mov_b64 exec, -1
L_notlast:
""")
    stamp(6)
    a(f"""
s_cmp_ge_u32 s2, 18
s_cbranch_scc1 L_fin
s_lshl_b32 s32, s2, 15
s_lshl_b32 s33, s3, 12
s_add_u32 s32, s32, s33
s_add_u32 s32, s32, {F_OFF}
v_lshl_add_u32 v8, v0, 4, s32
s_lshl_b32 s32, s2, 6
v_and_b32 v2, 31, v0
v_lshl_add_u32 v9, v2, 1, s32
global_load_ushort v10, v9, s[8:9]
v_and_b32 v2, 7, v0
v_lshrrev_b32 v3, 4, v0
v_lshl_add_u32 v2, v2, 2, v3
s_lshl_b32 s32, s3, 2
v_lshl_add_u32 v11, v2, 5, s32
v_and_b32 v2, 31, v0
v_lshlrev_b32 v12, 5, v2
s_mov_b32 s54, 0
L_fg:
""")
    for n in range(4): a(f"global_load_dwordx4 v[{64+4*n}:{67+4*n}], v8, s[30:31] offset:{1024*n}{ldG}")
    a("s_add_u32 s54, s54, 1")
    for n in range(4):
        a(f"s_waitcnt vmcnt({3-n})")
        chk(64 + 4*n, 2, 3, n == 0)
    a(f"""
s_cmp_eq_u64 s[52:53], -1
s_cbranch_scc1 L_fg_ok
s_cmp_lt_u32 s54, {SPIN_MAX}
s_cbranch_scc1 L_fg
L_fg_ok:
""")
    unmask(64, 16)
    for r in range(4): a(f"v_add_f32 v{64+r}, v{64+r}, v{68+r}\nv_add_f32 v{72+r}, v{72+r}, v{76+r}")
    for r in range(4): a(f"v_add_f32 v{64+r}, v{64+r}, v{72+r}")
    rscatter([64])
    a(f"""
v_add_f32_dpp v64, v64, v64 row_ror:8 {FULL}
ds_write_b32 v11, v64 offset:{FP}
s_mov_b64 exec, 1
ds_add_rtn_u32 v2, v1, v100 offset:{CTRL+36}
s_mov_b64 exec, -1
v_lshlrev_b32 v10, 16, v10
s_waitcnt lgkmcnt(0)
v_readfirstlane_b32 s55, v2
s_cmp_eq_u32 s55, 7
s_cbranch_scc0 L_fin
ds_read_b128 v[16:19], v12 offset:{FP}
ds_read_b128 v[20:23], v12 offset:{FP+16}
s_waitcnt lgkmcnt(0)
v_add_f32 v16, v16, v17
v_add_f32 v18, v18, v19
v_add_f32 v20, v20, v21
v_add_f32 v22, v22, v23
v_add_f32 v16, v16, v18
v_add_f32 v20, v20, v22
v_add_f32 v16, v16, v20
v_add_f32 v16, v16, v10
v_cvt_pk_bf16_f32 v16, v16, v16
s_mov_b32 exec_hi, 0
global_store_short v9, v16, s[26:27]
s_cmp_eq_u32 s2, 0
s_cbranch_scc0 L_fin
s_mov_b64 exec, 1
global_store_dword v1, v108, s[30:31] offset:{E_OFF}
""")
    a("L_fin:")
    if stamps:
        a(f"""
s_mov_b64 exec, -1
s_memrealtime s[80:81]
s_getreg_b32 s82, hwreg(HW_REG_XCC_ID)
s_waitcnt lgkmcnt(0)
s_sleep 100
s_sleep 100
v_readfirstlane_b32 s3, v127
s_lshl_b32 s6, s2, 4
s_add_u32 s6, s6, s3
s_lshl_b32 s6, s6, 6
s_add_u32 s6, s6, {ST_OFF}
v_mov_b32 v1, s6
""")
        for i in range(9): a(f"v_mov_b32 v{16+i}, s{64+2*i}")
        a("""
v_mov_b32 v25, s82
v_mov_b32 v26, s54
v_mov_b32 v27, 0
s_mov_b64 exec, 1
global_store_dwordx4 v1, v[16:19], s[30:31]
global_store_dwordx4 v1, v[20:23], s[30:31] offset:16
global_store_dwordx4 v1, v[24:27], s[30:31] offset:32
""")
    a("L_end:\ns_endpgm")
    body = a.text()
    if stamps:
        body = body.replace("    v_lshrrev_b32 v1, 6, v0\n", "    v_lshrrev_b32 v1, 6, v0\n    v_lshrrev_b32 v127, 6, v0\n", 1)
        pre = "".join(f"    s_mov_b64 s[{64+2*i}:{65+2*i}], 0\n" for i in range(1, 8))
        body = body.replace("    v_and_b32 v0, 63, v0\n", "    v_and_b32 v0, 63, v0\n" + pre, 1)
    body = hz.fix(body)
    hdr = open(os.path.join(os.path.dirname(os.path.abspath(__file__)), "header.txt")).read()
    return f"""{hdr}; @launch grid=(256,1,1) block=(1024,1,1) lds={LDS_BYTES}
.amdgcn_target "amdgcn-amd-amdhsa--gfx950"
.text
.globl {NAME}_kernel
.p2align 8
.type {NAME}_kernel,@function
{NAME}_kernel:
{body}
.section .rodata,"a"
.p2align 6
.amdhsa_kernel {NAME}_kernel
  .amdhsa_next_free_vgpr 128
  .amdhsa_next_free_sgpr 90
  .amdhsa_accum_offset 128
  .amdhsa_group_segment_fixed_size 0
  .amdhsa_kernarg_size 96
  .amdhsa_user_sgpr_count 2
  .amdhsa_user_sgpr_kernarg_segment_ptr 1
  .amdhsa_system_sgpr_workgroup_id_x 1
.end_amdhsa_kernel
"""

if __name__ == "__main__":
    import ast
    out = sys.argv[1]
    kw = {}
    for x in sys.argv[2:]:
        k, v = x.split("=", 1)
        try: v = ast.literal_eval(v)
        except Exception: v = (" " + v.replace("+", " ")) if v else ""
        kw[k] = v
    open(out, "w").write(gen(**kw))
```

```python
import sys, os
sys.path.insert(0, os.path.dirname(os.path.abspath(__file__)))
import hz

NAME = "parallel_sum__sliding_block_cached__geglu_ffn__decode"

class A:
    def __init__(self): self.l = []
    def __call__(self, s):
        for x in s.strip("\n").split("\n"):
            x = x.strip()
            if not x: continue
            self.l.append(x if x.split(";")[0].rstrip().endswith(":") else "    " + x)
    def text(self): return "\n".join(self.l) + "\n"

E_OFF = 0
P_OFF = 0x1000
O_OFF = P_OFF + 8 * 26 * 8 * 256
F_OFF = O_OFF + 256 * 1152
WS_END = F_OFF + 18 * 256 * 128
ST_OFF = 0x400000
CTRL = 0
LSL = 64; QL = 128; XN = 640; FP = 2944; PVP = 4096; LDS_BYTES = 12288
SPIN_MAX = 1 << 17

def gen(stamps=False, stP=" sc1", stO=" sc1", stF=" sc1", ldG=" sc1", slp1=24, slp2=0, nt=" nt", first=4, diag=None):
    if diag: stamps = True
    a = A()
    nst = [0]
    def stamp(i):
        if stamps: a(f"s_memrealtime s[{64+2*i}:{65+2*i}]")
    def masks():
        a("""
v_and_b32 v4, 1, v0
v_lshlrev_b32 v4, 4, v4
v_mov_b32 v5, 0xffff
v_lshlrev_b32 v3, v4, v5
v_bfe_u32 v2, v0, 1, 2
""")
        for r in range(4):
            a(f"v_cmp_eq_u32 vcc, {r}, v2")
            a(f"v_cndmask_b32 v{4+r}, 0, v3, vcc")
    def consts():
        a("""
s_mov_b32 s44, 0x07060500
s_mov_b32 s45, 0x07060501
s_mov_b32 s46, 0x07060502
s_mov_b32 s47, 0x07060503
s_mov_b32 s48, 0xffffff00
s_mov_b32 s49, 0x0c0c0400
s_mov_b32 s50, 0x04000c0c
""")
    def tag_ready(vT):
        a(f"s_add_u32 s40, s40, 0x9e3779b9\nv_mov_b32 v{vT}, s40")
    def put_tag(base, vT):
        for r in range(4): a(f"v_perm_b32 v{base+r}, v{base+r}, v{vT}, s{44+r}")
    def chk(base, t0, t1, first):
        a(f"""
v_perm_b32 v{t0}, v{base+1}, v{base}, s49
v_perm_b32 v{t1}, v{base+3}, v{base+2}, s50
v_or_b32 v{t0}, v{t0}, v{t1}
v_cmp_eq_u32 vcc, s40, v{t0}
""")
        a("s_mov_b64 s[52:53], vcc" if first else "s_and_b64 s[52:53], s[52:53], vcc")
    def unmask(base, n=4):
        for r in range(n): a(f"v_and_b32 v{base+r}, s48, v{base+r}")
    def rscatter(bases):
        for b in bases: a(f"v_permlane32_swap_b32 v{b}, v{b+2}\nv_permlane32_swap_b32 v{b+1}, v{b+3}")
        for b in bases: a(f"v_add_f32 v{b}, v{b}, v{b+2}\nv_add_f32 v{b+1}, v{b+1}, v{b+3}")
        for b in bases: a(f"v_permlane16_swap_b32 v{b}, v{b+1}")
        for b in bases: a(f"v_add_f32 v{b}, v{b}, v{b+1}")
    def allred_hi(v, t, op):
        a(f"""
v_mov_b32 v{t}, v{v}
v_permlane16_swap_b32 v{v}, v{t}
{op} v{v}, v{v}, v{t}
v_mov_b32 v{t}, v{v}
v_permlane32_swap_b32 v{v}, v{t}
{op} v{v}, v{v}, v{t}
""")
    FULL = "row_mask:0xf bank_mask:0xf"
    def lds_spin(label, off, val, vz, vt):
        a(f"""
s_mov_b32 s54, 0
{label}:
ds_read_b32 v{vt}, v{vz} offset:{off}
s_add_u32 s54, s54, 1
s_waitcnt lgkmcnt(0)
v_readfirstlane_b32 s55, v{vt}
s_cmp_ge_u32 s55, {val}
s_cbranch_scc1 {label}_ok
s_sleep 1
s_cmp_lt_u32 s54, {SPIN_MAX}
s_cbranch_scc1 {label}
{label}_ok:
""")

    a('L_start:')
    stamp(0)
    a("""
s_load_dwordx16 s[8:23], s[0:1], 0
s_load_dwordx8 s[24:31], s[0:1], 64
v_lshrrev_b32 v1, 6, v0
s_cmp_ge_u32 s2, 256
s_cbranch_scc1 L_end
v_readfirstlane_b32 s3, v1
v_and_b32 v0, 63, v0
s_and_b32 s4, s2, 7
s_lshr_b32 s5, s2, 3
s_cmp_ge_u32 s3, 8
s_cbranch_scc1 L_kv
s_and_b32 s6, s5, 3
s_lshr_b32 s7, s5, 2
s_mul_i32 s32, s6, 13
s_lshr_b32 s32, s32, 1
s_add_u32 s32, s32, s3
s_and_b32 s33, s5, 1
s_add_u32 s34, s33, 6
s_cmp_ge_u32 s3, s34
s_cbranch_scc1 L_notask
s_cmp_lt_u32 s32, 8
s_cselect_b32 s35, 8, 9
s_cselect_b32 s36, 0, 8
s_cmp_lt_u32 s32, 17
s_cselect_b32 s36, s36, 17
s_lshl_b32 s35, s35, 7
s_sub_u32 s36, s32, s36
s_mul_i32 s37, s7, 576
s_add_u32 s37, s37, s4
s_mul_i32 s37, s37, s35
s_lshl_b32 s36, s36, 7
s_add_u32 s37, s37, s36
s_lshl_b32 s38, s35, 6
v_and_b32 v1, 56, v0
v_and_b32 v2, 7, v0
v_mul_u32_u24 v1, s35, v1
v_lshl_add_u32 v2, v2, 4, s37
v_add_u32 v8, v1, v2
""")
    for n in range(1, 9): a(f"v_add_u32 v{8+n}, s38, v{7+n}")
    a("""
s_cmp_lt_u32 s32, 17
s_waitcnt lgkmcnt(0)
s_cselect_b64 s[42:43], s[20:21], s[22:23]
s_cmp_lt_u32 s32, 8
s_cselect_b64 s[42:43], s[14:15], s[42:43]
""")
    WD = 64
    AO = 20
    for n in range(9):
        if n == first: a("s_barrier")
        a(f"global_load_dwordx4 v[{WD+4*n}:{WD+4*n+3}], v{8+n}, s[42:43]{nt}")
    stamp(1)
    a("s_load_dword s40, s[30:31], %d" % E_OFF)
    masks(); consts()
    a(f"""
v_mov_b32 v1, 0
v_lshrrev_b32 v2, 3, v0
s_mul_i32 s36, s7, 288
v_lshl_add_u32 v2, v2, 2, s36
""")
    lds_spin("L_sx", CTRL + 24, 1, 1, 3)
    for n in range(9): a(f"ds_read_b32 v{8+n}, v2 offset:{XN+32*n}")
    tag_ready(17)
    a(f"""
s_mul_i32 s36, s4, 26
s_add_u32 s36, s36, s32
s_lshl_b32 s36, s36, 3
s_add_u32 s36, s36, s7
s_lshl_b32 s36, s36, 8
s_add_u32 s36, s36, {P_OFF}
v_and_b32 v2, 7, v0
v_lshrrev_b32 v3, 4, v0
v_lshl_add_u32 v2, v2, 1, v3
v_lshl_add_u32 v18, v2, 4, s36
s_movk_i32 s41, 0x80
s_waitcnt lgkmcnt(0)
""")
    for n in range(9):
        for r in range(4): a(f"v_and_b32 v{AO+4*n+r}, v{8+n}, v{4+r}")
    for n in range(9):
        a(f"s_waitcnt vmcnt({8-n})")
        a(f"v_mfma_f32_16x16x32_bf16 v[56:59], v[{AO+4*n}:{AO+4*n+3}], v[{WD+4*n}:{WD+4*n+3}], {'0' if n == 0 else 'v[56:59]'}")
    for r in range(4): a(f"v_mov_b32 v{60+r}, v{56+r}")
    for r in range(4): a(f"v_permlane32_swap_b32 v{56+r}, v{60+r}")
    for r in range(4): a(f"v_add_f32_dpp v{56+r}, v{60+r}, v{56+r} row_ror:8 {FULL}")
    for r in range(4): a(f"v_add_u32 v{56+r}, s41, v{56+r}")
    put_tag(56, 17)
    a(f"""
s_mov_b64 exec, 0x00ff00ff
global_store_dwordx4 v18, v[56:59], s[30:31]{stP}
v_mov_b32 v2, 1
s_mov_b64 exec, 1
ds_add_u32 v1, v2 offset:{CTRL+28}
s_mov_b64 exec, -1
""")
    stamp(2)
    a("""
s_cmp_ge_u32 s3, 5
s_cbranch_scc1 L_helper
""")
    a(f"""
s_lshr_b32 s6, s5, 1
s_mul_i32 s6, s6, 9
s_mul_i32 s7, s33, 5
s_add_u32 s6, s6, s7
s_sub_u32 s7, 4, s33
v_and_b32 v2, 7, v0
v_min_u32 v2, s7, v2
v_add_u32 v2, s6, v2
v_lshrrev_b32 v3, 4, v2
v_and_b32 v2, 15, v2
v_lshlrev_b32 v3, 11, v3
v_lshl_add_u32 v2, v2, 4, v3
v_lshrrev_b32 v3, 3, v0
v_lshl_add_u32 v2, v3, 8, v2
s_mul_i32 s36, s4, {26*2048}
s_add_u32 s36, s36, {P_OFF + 8*2048}
v_add_u32 v8, s36, v2
v_add_u32 v9, {9*2048}, v8
s_mul_i32 s36, s4, 144
s_add_u32 s36, s36, s6
s_mul_i32 s36, s36, 4608
s_add_u32 s56, s24, s36
s_addc_u32 s57, s25, 0
s_add_u32 s7, s7, 1
s_mul_i32 s58, s7, 4608
s_mov_b32 s59, 0x20000
s_lshl_b32 s36, s4, 5
s_add_u32 s36, s36, s5
s_mul_i32 s37, s36, 18432
s_add_u32 s60, s16, s37
s_addc_u32 s61, s17, 0
s_movk_i32 s62, 0x4800
s_mov_b32 s63, 0x20000
v_lshrrev_b32 v2, 4, v0
v_mul_u32_u24 v2, 1152, v2
v_and_b32 v3, 15, v0
v_lshl_add_u32 v2, v3, 4, v2
s_lshl_b32 s37, s3, 8
v_add_u32 v10, s37, v2
v_lshl_add_u32 v3, v3, 4, s37
v_cmp_gt_u32 vcc, 1152, v3
v_mov_b32 v2, 0x10000000
v_cndmask_b32 v10, v2, v10, vcc
s_mov_b32 s34, vcc_lo
s_mov_b32 s35, 0
s_and_b32 s37, s36, 0xfffffff0
s_mul_i32 s37, s37, 1152
s_add_u32 s37, s37, {O_OFF}
s_and_b32 s38, s5, 15
s_lshl_b32 s39, s38, 6
s_add_u32 s39, s39, s37
v_lshrrev_b32 v2, 2, v0
v_mul_u32_u24 v2, 1152, v2
v_and_b32 v3, 3, v0
v_lshl_add_u32 v3, v3, 4, v2
v_add_u32 v11, s39, v3
s_lshr_b32 s38, s38, 3
s_lshl_b32 s38, s38, 4
s_add_u32 s38, s38, s37
s_add_u32 s38, s38, 1024
v_add_u32 v12, s38, v2
v_bfe_u32 v2, v0, 2, 2
v_lshlrev_b32 v2, 15, v2
v_and_b32 v3, 3, v0
v_lshl_add_u32 v2, v3, 5, v2
v_and_b32 v3, 16, v0
v_add_u32 v2, v2, v3
s_lshl_b32 s37, s3, 17
s_lshl_b32 s38, s2, 7
s_add_u32 s37, s37, s38
s_add_u32 s37, s37, {F_OFF}
v_add_u32 v13, s37, v2
s_movk_i32 s36, 4608
s_movk_i32 s37, 9216
s_movk_i32 s38, 13824
s_movk_i32 s39, 18432
s_mov_b32 s54, 0
""")
    if slp1: a(f"s_sleep {slp1}")
    a(f"""
L_hg:
global_load_dwordx4 v[20:23], v8, s[30:31]{ldG}
global_load_dwordx4 v[24:27], v9, s[30:31]{ldG}
s_add_u32 s54, s54, 1
s_waitcnt vmcnt(0)
""")
    chk(20, 2, 3, True); chk(24, 2, 3, False)
    a(f"""
s_cmp_eq_u64 s[52:53], -1
s_cbranch_scc1 L_hg_ok
s_cmp_lt_u32 s54, {SPIN_MAX}
s_cbranch_scc1 L_hg
L_hg_ok:
""")
    stamp(3)
    unmask(20, 8)
    rscatter([20, 24])
    a(f"""
v_add_f32_dpp v20, v20, v20 row_ror:8 {FULL}
v_add_f32_dpp v24, v24, v24 row_ror:8 {FULL}
v_cvt_pk_bf16_f32 v20, 0, v20
v_cvt_pk_bf16_f32 v24, 0, v24
v_mul_f32 v21, v20, v20
v_mul_f32 v21, v21, v20
v_mov_b32 v22, 0x3d372713
v_fma_f32 v21, v21, v22, v20
v_mul_f32 v21, 0xc0135761, v21
v_exp_f32 v21, v21
v_add_f32 v21, 1.0, v21
v_rcp_f32 v21, v21
v_mul_f32 v21, v20, v21
v_cvt_pk_bf16_f32 v21, 0, v21
v_mul_f32 v21, v21, v24
v_cvt_pk_bf16_f32 v14, v21, v21
""")
    for n in range(5):
        for r in range(4): a(f"v_and_b32_dpp v{20+4*n+r}, v14, v{4+r} row_newbcast:{n} {FULL}")
    lds_spin("L_skv", CTRL + 20, 8, 1, 3)
    stamp(4)
    so = ["0", "s36", "s37", "s38", "s39"]
    for n in range(5): a(f"buffer_load_dwordx4 v[{WD+4*n}:{WD+4*n+3}], v10, s[56:59], {so[n]} offen{nt}")
    for n in range(4): a(f"buffer_load_dwordx4 v[{WD+20+4*n}:{WD+23+4*n}], v10, s[60:63], {so[n]} offen{nt}")
    stamp(5)
    for n in range(5):
        a(f"s_waitcnt vmcnt({8-n})")
        a(f"v_mfma_f32_16x16x32_bf16 v[56:59], v[{20+4*n}:{23+4*n}], v[{WD+4*n}:{WD+4*n+3}], {'0' if n == 0 else 'v[56:59]'}")
    a(f"""
s_mov_b32 s54, 0
L_og:
global_load_dwordx4 v[44:47], v12, s[30:31]{ldG}
global_load_dwordx4 v[40:43], v11, s[30:31]{ldG}
s_add_u32 s54, s54, 1
s_waitcnt vmcnt(0)
""")
    chk(44, 2, 3, True); chk(40, 15, 16, False)
    a(f"""
s_cmp_eq_u64 s[52:53], -1
s_cbranch_scc1 L_og_ok
s_cmp_lt_u32 s54, {SPIN_MAX}
s_cbranch_scc1 L_og
L_og_ok:
""")
    stamp(6)
    unmask(44, 2)
    a(f"""
v_max_f32_dpp v46, v44, v44 row_ror:4 {FULL}
""")
    unmask(40, 4)
    a(f"v_max_f32_dpp v46, v46, v46 row_ror:8 {FULL}")
    allred_hi(46, 47, "v_max_f32")
    a("""
v_sub_f32 v44, v44, v46
v_mul_f32 v44, 0x3fb8aa3b, v44
v_exp_f32 v44, v44
v_mul_f32 v45, v45, v44
""")
    for r in range(4): a(f"v_mul_f32 v{40+r}, v{40+r}, v44")
    a(f"v_add_f32_dpp v45, v45, v45 row_ror:4 {FULL}")
    rscatter([40])
    a(f"v_add_f32_dpp v45, v45, v45 row_ror:8 {FULL}")
    a(f"v_add_f32_dpp v40, v40, v40 row_ror:4 {FULL}")
    allred_hi(45, 47, "v_add_f32")
    a(f"""
v_add_f32_dpp v40, v40, v40 row_ror:8 {FULL}
v_rcp_f32 v45, v45
v_mul_f32 v40, v40, v45
v_cvt_pk_bf16_f32 v40, v40, v40
""")
    for n in range(4):
        for r in range(4): a(f"v_and_b32_dpp v{20+4*n+r}, v40, v{4+r} quad_perm:[{n},{n},{n},{n}] {FULL}")
        if n >= 1:
            m = n - 1
            a(f"v_mfma_f32_16x16x32_bf16 v[56:59], v[{20+4*m}:{23+4*m}], v[{WD+20+4*m}:{WD+23+4*m}], v[56:59]")
    a(f"v_mfma_f32_16x16x32_bf16 v[56:59], v[32:35], v[{WD+32}:{WD+35}], v[56:59]")
    put_tag(56, 17)
    a(f"""
s_mov_b64 exec, s[34:35]
global_store_dwordx4 v13, v[56:59], s[30:31]{stF}
s_mov_b64 exec, -1
""")
    stamp(7)
    a("s_branch L_fin")

    a(f"""
L_notask:
s_cmp_eq_u32 s3, 7
s_cbranch_scc1 L_ln
s_barrier
s_waitcnt lgkmcnt(0)
s_load_dword s40, s[30:31], {E_OFF}
s_branch L_h0
L_ln:
s_getpc_b64 s[34:35]
L_pc:
s_lshl_b32 s36, s6, 4
v_add_u32 v2, s36, v0
v_lshlrev_b32 v2, 7, v2
v_min_u32 v2, L_end-L_start, v2
s_sub_u32 s34, s34, L_pc-L_start
s_subb_u32 s35, s35, 0
v_mov_b32 v3, 0xff800000
v_cmp_gt_u32 vcc, 2, v0
v_lshlrev_b32 v1, 2, v0
v_cndmask_b32 v3, 0, v3, vcc
s_mov_b64 exec, 0xffff
global_load_dword v19, v2, s[34:35]
ds_write_b32 v1, v3
s_mov_b64 exec, -1
v_lshlrev_b32 v1, 4, v0
v_mov_b32 v12, 0
v_mov_b32 v13, 0
v_mov_b32 v14, 0
v_mov_b32 v15, 0
s_waitcnt lgkmcnt(0)
global_load_dwordx4 v[8:11], v1, s[8:9]
s_mov_b64 exec, 0xff
global_load_dwordx4 v[12:15], v1, s[8:9] offset:1024
s_mov_b64 exec, -1
s_barrier
s_load_dword s40, s[30:31], {E_OFF}
s_mov_b32 s41, 0xffff0000
s_waitcnt vmcnt(0)
""")
    stamp(1)
    for r in range(8):
        a(f"v_lshlrev_b32 v{20+2*r}, 16, v{8+r}")
        a(f"v_and_b32 v{21+2*r}, s41, v{8+r}")
    def allred64(v, t):
        for sh in (1, 2, 4, 8): a(f"v_add_f32_dpp v{v}, v{v}, v{v} row_ror:{sh} {FULL}")
        allred_hi(v, t, "v_add_f32")
    a("v_add_f32 v2, v20, v21\nv_add_f32 v3, v22, v23")
    for r in range(2, 8): a(f"v_add_f32 v2, v2, v{20+2*r}\nv_add_f32 v3, v3, v{21+2*r}")
    a("v_add_f32 v2, v2, v3")
    allred64(2, 3)
    a("v_mul_f32 v2, 0x3ae38e39, v2      ; mean (1/576)")
    for r in range(16): a(f"v_sub_f32 v{40+r}, v{20+r}, v2")
    a("v_mul_f32 v3, v40, v40\nv_mul_f32 v16, v41, v41")
    for r in range(1, 4): a(f"v_fmac_f32 v3, v{40+2*r}, v{40+2*r}\nv_fmac_f32 v16, v{41+2*r}, v{41+2*r}")
    a("s_mov_b64 exec, 0xff")
    for r in range(4, 8): a(f"v_fmac_f32 v3, v{40+2*r}, v{40+2*r}\nv_fmac_f32 v16, v{41+2*r}, v{41+2*r}")
    a("s_mov_b64 exec, -1")
    a("v_add_f32 v3, v3, v16")
    allred64(3, 16)
    a("""
v_mul_f32 v3, 0x3ae38e39, v3
v_cvt_pk_bf16_f32 v3, 0, v3
v_add_f32 v3, 0x3727c5ac, v3
v_cvt_pk_bf16_f32 v3, 0, v3
v_sqrt_f32 v3, v3
v_cvt_pk_bf16_f32 v2, 0, v2
v_cvt_pk_bf16_f32 v3, 0, v3
v_rcp_f32 v3, v3
""")
    for r in range(16): a(f"v_sub_f32 v{20+r}, v{20+r}, v2")
    for r in range(16): a(f"v_cvt_pk_bf16_f32 v{20+r}, 0, v{20+r}")
    for r in range(16): a(f"v_mul_f32 v{20+r}, v{20+r}, v3")
    for r in range(16): a(f"v_cvt_pk_bf16_f32 v{20+r}, v{20+r}, v{20+r}")
    a(f"""
v_lshlrev_b32 v2, 5, v0
v_mov_b32 v1, 0
v_mov_b32 v3, 1
ds_write_b128 v2, v[20:23] offset:{XN}
ds_write_b128 v2, v[24:27] offset:{XN+16}
s_mov_b64 exec, 0xff
ds_write_b128 v2, v[28:31] offset:{XN+2048}
ds_write_b128 v2, v[32:35] offset:{XN+2064}
s_mov_b64 exec, 1
ds_write_b32 v1, v3 offset:{CTRL+24}
s_mov_b64 exec, -1
""")
    stamp(2)
    a("L_h0:")
    consts()
    a("s_waitcnt lgkmcnt(0)")
    tag_ready(17)
    if slp2: a(f"s_sleep {slp2}")
    a(f"""
L_helper:
s_cmp_eq_u32 s3, 5
s_cbranch_scc1 L_fin
s_sub_u32 s6, s3, 6
s_lshr_b32 s7, s5, 4
s_lshl_b32 s7, s7, 1
s_add_u32 s7, s7, s6
s_lshl_b32 s7, s7, 12
s_mul_i32 s36, s4, {26*2048}
s_add_u32 s36, s36, s7
s_add_u32 s36, s36, {P_OFF}
v_lshl_add_u32 v8, v0, 4, s36
v_and_b32 v2, 15, v0
v_lshrrev_b32 v3, 4, v0
v_lshl_add_u32 v2, v2, 2, v3
s_lshl_b32 s6, s6, 8
v_lshl_add_u32 v9, v2, 1, s6
v_mov_b32 v1, 0
v_mov_b32 v10, 1
""")
    lds_spin("L_sp", CTRL + 28, 6, 1, 3)
    a("s_mov_b32 s54, 0")
    if slp1: a(f"s_sleep {slp1}")
    a("L_qg:")
    for n in range(4): a(f"global_load_dwordx4 v[{20+4*n}:{23+4*n}], v8, s[30:31] offset:{1024*n}{ldG}")
    a("s_add_u32 s54, s54, 1\ns_waitcnt vmcnt(0)")
    for n in range(4): chk(20 + 4*n, 2, 3, n == 0)
    a(f"""
s_cmp_eq_u64 s[52:53], -1
s_cbranch_scc1 L_qg_ok
s_cmp_lt_u32 s54, {SPIN_MAX}
s_cbranch_scc1 L_qg
L_qg_ok:
""")
    stamp(3)
    unmask(20, 16)
    for r in range(4): a(f"v_add_f32 v{20+r}, v{20+r}, v{24+r}\nv_add_f32 v{28+r}, v{28+r}, v{32+r}")
    rscatter([20, 28])
    a(f"""
v_cvt_pk_bf16_f32 v20, v20, v28
ds_write_b16 v9, v20 offset:{QL}
ds_write_b16_d16_hi v9, v20 offset:{QL+128}
s_mov_b64 exec, 1
ds_add_u32 v1, v10 offset:{CTRL+16}
s_mov_b64 exec, -1
""")
    stamp(4)
    a("s_branch L_fin")

    KD, VD = 32, 64
    a(f"""
L_kv:
s_sub_u32 s3, s3, 8
s_lshl_b32 s6, s4, 5
s_add_u32 s6, s6, s5
s_lshr_b32 s7, s6, 4
s_lshl_b32 s7, s7, 24
s_and_b32 s32, s5, 15
s_lshl_b32 s32, s32, 16
s_add_u32 s7, s7, s32
s_lshl_b32 s32, s3, 13
s_add_u32 s7, s7, s32
s_add_u32 s7, s7, 0xf01000
v_lshl_add_u32 v1, v0, 4, s7
s_barrier
s_waitcnt lgkmcnt(0)
""")
    for n in range(8): a(f"global_load_dwordx4 v[{KD+4*n}:{KD+4*n+3}], v1, s[10:11] offset:{1024*n-4096}{nt}")
    for n in range(8): a(f"global_load_dwordx4 v[{VD+4*n}:{VD+4*n+3}], v1, s[12:13] offset:{1024*n-4096}{nt}")
    a(f"""
v_mov_b32 v1, 0
v_mov_b32 v100, 1
s_mov_b64 exec, 1
ds_add_u32 v1, v100 offset:{CTRL+20}
s_mov_b64 exec, -1
""")
    stamp(1)
    a("s_load_dword s40, s[30:31], %d" % E_OFF)
    masks(); consts()
    for n in range(16): a(f"v_mov_b32 v{16+n}, 0")
    a(f"""
v_and_b32 v101, 15, v0
v_lshlrev_b32 v101, 4, v101
v_bfe_u32 v102, v0, 3, 1
v_lshlrev_b32 v103, 2, v102
s_lshl_b32 s32, s3, 2
v_lshl_add_u32 v104, v102, 5, s32
s_lshl_b32 s32, s3, 10
v_lshl_add_u32 v105, v0, 4, s32
v_and_b32 v2, 15, v0
v_lshlrev_b32 v2, 5, v2
v_and_b32 v3, 16, v0
v_add_u32 v2, v2, v3
v_and_b32 v3, 32, v0
v_lshl_add_u32 v2, v3, 4, v2
s_mul_i32 s32, s6, 1152
s_add_u32 s32, s32, {O_OFF}
v_add_u32 v106, s32, v2
v_lshl_add_u32 v107, v0, 4, s32
s_mov_b32 s34, 0xff00ff00
s_mov_b32 s35, 0xff00ff00
s_mov_b32 s36, 0x01010101
s_mov_b32 s37, 0x01010101
s_mov_b32 s38, 0x3db504f3
s_mov_b32 s39, 0x3fb8aa3b
""")
    lds_spin("L_sq", CTRL + 16, 2, 1, 3)
    stamp(2)
    a(f"""
ds_read_b128 v[8:11], v101 offset:{QL}
ds_read_b128 v[12:15], v101 offset:{QL+256}
""")
    tag_ready(108)
    a("s_waitcnt lgkmcnt(0)")
    for n in range(8):
        a(f"s_waitcnt vmcnt({15-n})")
        for r in range(4):
            a(f"v_dot2c_f32_bf16 v{16+n}, v{KD+4*n+r}, v{8+r}")
            a(f"v_dot2c_f32_bf16 v{24+n}, v{KD+4*n+r}, v{12+r}")
    for n in range(8): a(f"v_add_f32_dpp v{16+n}, v{16+n}, v{16+n} row_ror:8 row_mask:0xf bank_mask:0x3")
    for n in range(8): a(f"v_add_f32_dpp v{16+n}, v{24+n}, v{24+n} row_ror:8 row_mask:0xf bank_mask:0xc")
    for n in range(8): a(f"v_add_f32_dpp v{16+n}, v{16+n}, v{16+n} row_half_mirror {FULL}")
    for n in range(8): a(f"v_add_f32_dpp v{16+n}, v{16+n}, v{16+n} quad_perm:[1,0,3,2] {FULL}")
    for n in range(8): a(f"v_add_f32_dpp v{16+n}, v{16+n}, v{16+n} quad_perm:[2,3,0,1] {FULL}")
    for n in range(8): a(f"v_cvt_pk_bf16_f32 v{16+n}, 0, v{16+n}")
    for n in range(8): a(f"v_mul_f32 v{16+n}, s38, v{16+n}")
    for n in range(8): a(f"v_cvt_pk_bf16_f32 v{16+n}, 0, v{16+n}")
    a(f"""
v_max3_f32 v24, v16, v17, v18
v_max3_f32 v25, v19, v20, v21
v_max3_f32 v24, v24, v22, v23
v_max_f32 v24, v24, v25
s_mov_b64 exec, s[36:37]
ds_max_f32 v103, v24 offset:{CTRL}
s_mov_b64 exec, 1
ds_add_u32 v1, v100 offset:{CTRL+8}
s_mov_b64 exec, -1
s_mov_b32 s54, 0
L_sm:
ds_read_b128 v[28:31], v1 offset:{CTRL}
s_add_u32 s54, s54, 1
s_waitcnt lgkmcnt(0)
v_readfirstlane_b32 s55, v30
s_cmp_ge_u32 s55, 8
s_cbranch_scc1 L_sm_ok
s_sleep 1
s_cmp_lt_u32 s54, {SPIN_MAX}
s_cbranch_scc1 L_sm
L_sm_ok:
""")
    stamp(3)
    a("v_cndmask_b32 v24, v28, v29, s[34:35]")
    for n in range(8): a(f"v_sub_f32 v{16+n}, v{16+n}, v24")
    for n in range(8): a(f"v_mul_f32 v{16+n}, s39, v{16+n}")
    for n in range(8): a(f"v_exp_f32 v{16+n}, v{16+n}")
    a("""
v_add_f32 v24, v16, v17
v_add_f32 v25, v18, v19
v_add_f32 v26, v20, v21
v_add_f32 v27, v22, v23
""")
    for n in range(8): a(f"v_cvt_pk_bf16_f32 v{16+n}, v{16+n}, v{16+n}")
    a("v_add_f32 v24, v24, v25\nv_add_f32 v26, v26, v27")
    for n in range(8):
        for r in range(4): a(f"v_and_b32 v{KD+4*n+r}, v{16+n}, v{4+r}")
    a("v_add_f32 v24, v24, v26")
    allred_hi(24, 25, "v_add_f32")
    a(f"ds_write_b32 v104, v24 offset:{LSL}")
    stamp(4)
    for n in range(8):
        a(f"s_waitcnt vmcnt({7-n})")
        a(f"v_mfma_f32_16x16x32_bf16 v[96:99], v[{KD+4*n}:{KD+4*n+3}], v[{VD+4*n}:{VD+4*n+3}], {'0' if n == 0 else 'v[96:99]'}")
    stamp(5)
    a(f"""
ds_write_b128 v105, v[96:99] offset:{PVP}
s_mov_b64 exec, 1
ds_add_rtn_u32 v2, v1, v100 offset:{CTRL+32}
s_mov_b64 exec, -1
v_lshlrev_b32 v3, 4, v0
v_and_b32 v101, 1, v0
v_lshlrev_b32 v102, 5, v101
v_cmp_eq_u32 vcc, 1, v101
s_waitcnt lgkmcnt(0)
v_readfirstlane_b32 s55, v2
s_cmp_eq_u32 s55, 7
s_cbranch_scc0 L_notlast
""")
    for n in range(8): a(f"ds_read_b128 v[{32+4*n}:{35+4*n}], v3 offset:{PVP+1024*n}")
    a(f"""
ds_read_b128 v[16:19], v102 offset:{LSL}
ds_read_b128 v[20:23], v102 offset:{LSL+16}
v_cndmask_b32 v24, v28, v29, vcc
v_mov_b32 v26, 0
v_mov_b32 v27, 0
""")
    w = [8, 6, 4, 2]
    for p in range(4):
        a(f"s_waitcnt lgkmcnt({0 if stamps else w[p]})")
        for r in range(4): a(f"v_add_f32 v{32+8*p+r}, v{32+8*p+r}, v{36+8*p+r}")
        if p in (1, 3):
            for r in range(4): a(f"v_add_f32 v{32+8*(p-1)+r}, v{32+8*(p-1)+r}, v{32+8*p+r}")
    for r in range(4): a(f"v_add_f32 v{32+r}, v{32+r}, v{48+r}")
    put_tag(32, 108)
    a(f"""
global_store_dwordx4 v106, v[32:35], s[30:31]{stO}
s_waitcnt lgkmcnt(0)
v_add_f32 v16, v16, v17
v_add_f32 v18, v18, v19
v_add_f32 v20, v20, v21
v_add_f32 v22, v22, v23
v_add_f32 v16, v16, v18
v_add_f32 v20, v20, v22
v_add_f32 v25, v16, v20
""")
    put_tag(24, 108)
    a(f"""
s_mov_b64 exec, 0xff
global_store_dwordx4 v107, v[24:27], s[30:31] offset:1024{stO}
s_mov_b64 exec, -1
L_notlast:
""")
    stamp(6)
    a(f"""
s_cmp_ge_u32 s2, 18
s_cbranch_scc1 L_fin
s_lshl_b32 s32, s2, 15
s_lshl_b32 s33, s3, 12
s_add_u32 s32, s32, s33
s_add_u32 s32, s32, {F_OFF}
v_lshl_add_u32 v8, v0, 4, s32
s_lshl_b32 s32, s2, 6
v_and_b32 v2, 31, v0
v_lshl_add_u32 v9, v2, 1, s32
global_load_ushort v10, v9, s[8:9]
v_and_b32 v2, 7, v0
v_lshrrev_b32 v3, 4, v0
v_lshl_add_u32 v2, v2, 2, v3
s_lshl_b32 s32, s3, 2
v_lshl_add_u32 v11, v2, 5, s32
v_and_b32 v2, 31, v0
v_lshlrev_b32 v12, 5, v2
s_mov_b32 s54, 0
L_fg:
""")
    for n in range(4): a(f"global_load_dwordx4 v[{64+4*n}:{67+4*n}], v8, s[30:31] offset:{1024*n}{ldG}")
    a("s_add_u32 s54, s54, 1")
    for n in range(4):
        a(f"s_waitcnt vmcnt({3-n})")
        chk(64 + 4*n, 2, 3, n == 0)
    a(f"""
s_cmp_eq_u64 s[52:53], -1
s_cbranch_scc1 L_fg_ok
s_cmp_lt_u32 s54, {SPIN_MAX}
s_cbranch_scc1 L_fg
L_fg_ok:
""")
    unmask(64, 16)
    for r in range(4): a(f"v_add_f32 v{64+r}, v{64+r}, v{68+r}\nv_add_f32 v{72+r}, v{72+r}, v{76+r}")
    for r in range(4): a(f"v_add_f32 v{64+r}, v{64+r}, v{72+r}")
    rscatter([64])
    a(f"""
v_add_f32_dpp v64, v64, v64 row_ror:8 {FULL}
ds_write_b32 v11, v64 offset:{FP}
s_mov_b64 exec, 1
ds_add_rtn_u32 v2, v1, v100 offset:{CTRL+36}
s_mov_b64 exec, -1
v_lshlrev_b32 v10, 16, v10
s_waitcnt lgkmcnt(0)
v_readfirstlane_b32 s55, v2
s_cmp_eq_u32 s55, 7
s_cbranch_scc0 L_fin
ds_read_b128 v[16:19], v12 offset:{FP}
ds_read_b128 v[20:23], v12 offset:{FP+16}
s_waitcnt lgkmcnt(0)
v_add_f32 v16, v16, v17
v_add_f32 v18, v18, v19
v_add_f32 v20, v20, v21
v_add_f32 v22, v22, v23
v_add_f32 v16, v16, v18
v_add_f32 v20, v20, v22
v_add_f32 v16, v16, v20
v_add_f32 v16, v16, v10
v_cvt_pk_bf16_f32 v16, v16, v16
s_mov_b32 exec_hi, 0
global_store_short v9, v16, s[26:27]
s_cmp_eq_u32 s2, 0
s_cbranch_scc0 L_fin
s_mov_b64 exec, 1
global_store_dword v1, v108, s[30:31] offset:{E_OFF}
""")
    a("L_fin:")
    if diag:
        wg, wv, idx, mult = diag
        a(f"""
s_mov_b64 exec, -1
s_memrealtime s[80:81]
v_readfirstlane_b32 s3, v127
s_waitcnt lgkmcnt(0)
s_cmp_eq_u32 s2, {wg}
s_cbranch_scc0 L_end
s_cmp_eq_u32 s3, {wv}
s_cbranch_scc0 L_end
s_sub_u32 s6, s{64+2*idx}, s64
s_min_u32 s6, s6, 10000
s_mul_i32 s6, s6, {mult}
s_add_u32 s6, s6, 4000
L_dg:
s_memrealtime s[82:83]
s_waitcnt lgkmcnt(0)
s_sub_u32 s7, s82, s64
s_cmp_lt_u32 s7, s6
s_cbranch_scc1 L_dg
""")
    elif stamps:
        a(f"""
s_mov_b64 exec, -1
s_memrealtime s[80:81]
s_getreg_b32 s82, hwreg(HW_REG_XCC_ID)
s_waitcnt lgkmcnt(0)
s_sleep 100
s_sleep 100
v_readfirstlane_b32 s3, v127
s_lshl_b32 s6, s2, 4
s_add_u32 s6, s6, s3
s_lshl_b32 s6, s6, 6
s_add_u32 s6, s6, {ST_OFF}
v_mov_b32 v1, s6
""")
        for i in range(9): a(f"v_mov_b32 v{16+i}, s{64+2*i}")
        a("""
v_mov_b32 v25, s82
v_mov_b32 v26, s54
v_mov_b32 v27, 0
s_mov_b64 exec, 1
global_store_dwordx4 v1, v[16:19], s[30:31]
global_store_dwordx4 v1, v[20:23], s[30:31] offset:16
global_store_dwordx4 v1, v[24:27], s[30:31] offset:32
""")
    a("L_end:\ns_endpgm")
    body = a.text()
    if stamps:
        body = body.replace("    v_lshrrev_b32 v1, 6, v0\n", "    v_lshrrev_b32 v1, 6, v0\n    v_lshrrev_b32 v127, 6, v0\n", 1)
        pre = "".join(f"    s_mov_b64 s[{64+2*i}:{65+2*i}], 0\n" for i in range(1, 8))
        body = body.replace("    v_and_b32 v0, 63, v0\n", "    v_and_b32 v0, 63, v0\n" + pre, 1)
    body = hz.fix(body)
    hdr = open(os.path.join(os.path.dirname(os.path.abspath(__file__)), "header.txt")).read()
    return f"""{hdr}; @launch grid=(256,1,1) block=(1024,1,1) lds={LDS_BYTES}
.amdgcn_target "amdgcn-amd-amdhsa--gfx950"
.text
.globl {NAME}_kernel
.p2align 8
.type {NAME}_kernel,@function
{NAME}_kernel:
{body}
.section .rodata,"a"
.p2align 6
.amdhsa_kernel {NAME}_kernel
  .amdhsa_next_free_vgpr 128
  .amdhsa_next_free_sgpr 90
  .amdhsa_accum_offset 128
  .amdhsa_group_segment_fixed_size 0
  .amdhsa_kernarg_size 96
  .amdhsa_user_sgpr_count 2
  .amdhsa_user_sgpr_kernarg_segment_ptr 1
  .amdhsa_system_sgpr_workgroup_id_x 1
.end_amdhsa_kernel
"""

if __name__ == "__main__":
    import ast
    out = sys.argv[1]
    kw = {}
    for x in sys.argv[2:]:
        k, v = x.split("=", 1)
        try: v = ast.literal_eval(v)
        except Exception: v = (" " + v.replace("+", " ")) if v else ""
        kw[k] = v
    open(out, "w").write(gen(**kw))
```

```python
import sys, os
sys.path.insert(0, os.path.dirname(os.path.abspath(__file__)))
import hz

NAME = "parallel_sum__sliding_block_cached__geglu_ffn__decode"

class A:
    def __init__(self): self.l = []
    def __call__(self, s):
        for x in s.strip("\n").split("\n"):
            x = x.strip()
            if not x: continue
            self.l.append(x if x.split(";")[0].rstrip().endswith(":") else "    " + x)
    def text(self): return "\n".join(self.l) + "\n"

E_OFF = 0
X_OFF = 0x400
A_OFF = 0x1000
PQ_OFF = A_OFF
PF_OFF = PQ_OFF + 16384
O_OFF = PF_OFF + 32 * 2304
L_OFF = O_OFF + 32768
M_OFF = L_OFF + 512
GSZ = M_OFF + 512 - A_OFF
F1_OFF = PF_OFF
B_DELTA = 0x100000
assert 8 * GSZ <= B_DELTA and GSZ % 128 == 0
F2_OFF = A_OFF + 2 * B_DELTA
ST_OFF = 0x400000
C_M, C_CM, C_Q, C_KV, C_P, C_PV, C_O, C_MODE, C_R, C_W, C_G = 0, 8, 16, 20, 28, 32, 36, 40, 44, 48, 24
HL = 128; LSL = 256; QL = 320; XN = 832; PVP = 3136; KL = 12288; LDS_BYTES = KL + 65536
TAG2 = 0x80808080
SPIN_MAX = 1 << 17
N = None

def gen(stamps=False, ldG=" sc1 nt", ldF=" sc1 nt", slp1=4, slph=8, nt=" nt", kvs=(N, N, N, N) + (3,) * 12,
        force=0, qspin=8, s2a=9, aat=5, fwait=1, s2prio=3, gate=1, g0=1, etrig=0, fslp=1):
    a = A()
    FULL = "row_mask:0xf bank_mask:0xf"
    def stamp(i):
        if stamps and (stamps != 2 or i == 0): a(f"s_memrealtime s[{64+2*i}:{65+2*i}]")
    def masks():
        a("""
v_and_b32 v4, 1, v0
v_lshlrev_b32 v4, 4, v4
v_mov_b32 v5, 0xffff
v_lshlrev_b32 v3, v4, v5
v_bfe_u32 v2, v0, 1, 2
""")
        for r in range(4):
            a(f"v_cmp_eq_u32 vcc, {r}, v2")
            a(f"v_cndmask_b32 v{4+r}, 0, v3, vcc")
    def consts():
        a("""
s_mov_b32 s44, 0x07060500
s_mov_b32 s45, 0x07060501
s_mov_b32 s46, 0x07060502
s_mov_b32 s47, 0x07060503
s_mov_b32 s48, 0xffffff00
s_mov_b32 s49, 0x0c0c0400
s_mov_b32 s50, 0x04000c0c
""")
    def tag_ready(vT):
        a(f"s_add_u32 s40, s40, 0x9e3779b9\ns_or_b32 s40, s40, 1\nv_mov_b32 v{vT}, s40")
    def put_tag(base, vT):
        for r in range(4): a(f"v_perm_b32 v{base+r}, v{base+r}, v{vT}, s{44+r}")
    def chk(base, t0, t1, first, tag="s40"):
        a(f"""
v_perm_b32 v{t0}, v{base+1}, v{base}, s49
v_perm_b32 v{t1}, v{base+3}, v{base+2}, s50
v_or_b32 v{t0}, v{t0}, v{t1}
v_cmp_eq_u32 vcc, {tag}, v{t0}
""")
        if first is not None: a("s_mov_b64 s[52:53], vcc" if first else "s_and_b64 s[52:53], s[52:53], vcc")
    def unmask(base, n=4):
        for r in range(n): a(f"v_and_b32 v{base+r}, s48, v{base+r}")
    def rscatter(bases):
        for b in bases: a(f"v_permlane32_swap_b32 v{b}, v{b+2}\nv_permlane32_swap_b32 v{b+1}, v{b+3}")
        for b in bases: a(f"v_add_f32 v{b}, v{b}, v{b+2}\nv_add_f32 v{b+1}, v{b+1}, v{b+3}")
        for b in bases: a(f"v_permlane16_swap_b32 v{b}, v{b+1}")
        for b in bases: a(f"v_add_f32 v{b}, v{b}, v{b+1}")
    def allred_hi(v, t, op):
        a(f"""
v_mov_b32 v{t}, v{v}
v_permlane16_swap_b32 v{v}, v{t}
{op} v{v}, v{v}, v{t}
v_mov_b32 v{t}, v{v}
v_permlane32_swap_b32 v{v}, v{t}
{op} v{v}, v{v}, v{t}
""")
    def lds_spin(label, off, val, vz, vt, slp=1):
        a(f"""
s_mov_b32 s54, 0
{label}:
ds_read_b32 v{vt}, v{vz} offset:{off}
s_add_u32 s54, s54, 1
s_waitcnt lgkmcnt(0)
v_readfirstlane_b32 s55, v{vt}
s_cmp_ge_u32 s55, {val}
s_cbranch_scc1 {label}_ok
s_sleep {slp}
s_cmp_lt_u32 s54, {SPIN_MAX}
s_cbranch_scc1 {label}
{label}_ok:
""")
    def lds_inc(off, vz, vone):
        a(f"s_mov_b64 exec, 1\nds_add_u32 v{vz}, v{vone} offset:{off}\ns_mov_b64 exec, -1")
    def republish(label):
        a(f"""
s_cmp_eq_u32 s55, 2
s_cbranch_scc0 {label}
v_add_u32 v19, {B_DELTA}, v18
s_mov_b64 exec, s[34:35]
global_store_dwordx4 v19, v[56:59], s[30:31] sc1
s_mov_b64 exec, -1
{label}:
""")
    def mfma(d, x, y, first=False):
        a(f"v_mfma_f32_16x16x32_bf16 v[{d}:{d+3}], v[{x}:{x+3}], v[{y}:{y+3}], {'0' if first else 'v[%d:%d]' % (d, d+3)}")

    a("L_start:")
    stamp(0)
    a(f"""
s_load_dwordx16 s[8:23], s[0:1], 0
s_load_dwordx8 s[24:31], s[0:1], 64
v_lshrrev_b32 v1, 6, v0
s_cmp_ge_u32 s2, 256
s_cbranch_scc1 L_end
v_readfirstlane_b32 s3, v1
v_and_b32 v0, 63, v0
s_and_b32 s4, s2, 7
s_lshr_b32 s5, s2, 3
s_cmp_gt_u32 s3, 7
s_cbranch_scc1 L_kv
s_sub_u32 s3, s3, 1
s_cbranch_scc0 L_p1
s_mov_b32 s3, 7
s_getpc_b64 s[34:35]
v_lshlrev_b32 v3, 7, v0
global_load_dword v19, v3, s[34:35] offset:448
v_lshlrev_b32 v1, 4, v0
v_min_u32 v2, 112, v1
s_waitcnt lgkmcnt(0)
global_load_dwordx4 v[8:11], v1, s[8:9]
global_load_dwordx4 v[12:15], v2, s[8:9] offset:1024
s_load_dword s40, s[30:31], {E_OFF}
s_branch L_ln
L_p1:
s_and_b32 s7, s5, 15
s_lshr_b32 s6, s5, 4
s_and_b32 s37, s5, 14
s_add_u32 s37, s37, s3
s_and_b32 s39, s5, 1
s_lshl1_add_u32 s39, s6, s39
s_sub_u32 s36, s3, 2
s_cselect_b32 s35, 8, 9
s_cselect_b32 s36, s39, s36
s_cselect_b32 s7, s37, s7
s_lshl_b32 s35, s35, 7
s_lshl_b32 s36, s36, 8
s_mul_i32 s37, s7, 288
s_lshl_b32 s38, s35, 5
s_add_u32 s37, s37, s4
s_mul_i32 s37, s37, s35
s_add_u32 s37, s37, s36
v_lshrrev_b32 v1, 1, v0
v_and_b32 v1, 24, v1
v_and_b32 v2, 15, v0
v_mul_u32_u24 v1, s35, v1
v_lshl_add_u32 v2, v2, 4, s37
v_add_u32 v8, v1, v2
""")
    for n in range(1, 9): a(f"v_add_u32 v{8+n}, s38, v{7+n}")
    a("""
s_cmp_eq_u32 s3, 6
s_cselect_b32 s34, 0x00ff00ff, -1
s_mov_b32 exec_lo, s34
s_mov_b32 exec_hi, s34
s_cmp_eq_u32 s6, 0
s_waitcnt lgkmcnt(0)
s_cselect_b64 s[42:43], s[20:21], s[22:23]
s_cmp_lt_u32 s3, 2
s_cselect_b64 s[42:43], s[14:15], s[42:43]
""")
    WD = 64; AO = 20
    for n in range(9): a(f"global_load_dwordx4 v[{WD+4*n}:{WD+4*n+3}], v{8+n}, s[42:43]{nt}")
    a("s_barrier")
    stamp(1)
    a(f"s_mov_b64 exec, -1\ns_load_dword s40, s[30:31], {E_OFF}\ns_mov_b32 s35, 0")
    a(f"""
v_lshrrev_b32 v2, 4, v0
s_mul_i32 s36, s7, 144
v_lshl_add_u32 v19, v2, 2, s36
""")
    for n in range(9): a(f"ds_read_b32 v{8+n}, v19 offset:{XN+16*n}")
    masks(); consts()
    a(f"""
v_mov_b32 v1, 0
s_mul_i32 s32, s4, {GSZ}
s_lshr_b32 s37, s7, 1
s_lshl3_add_u32 s36, s39, s37
s_lshl_b32 s36, s36, 9
s_add_u32 s36, s36, {PQ_OFF}
s_lshl_b32 s33, s4, 5
s_add_u32 s33, s33, s5
s_mul_i32 s37, s5, 2304
s_lshl_b32 s38, s3, 9
s_add_u32 s37, s37, s38
s_add_u32 s37, s37, {PF_OFF - 1024}
s_cmp_lt_u32 s3, 2
s_cselect_b32 s36, s36, s37
s_add_u32 s36, s36, s32
v_and_b32 v2, 15, v0
v_lshlrev_b32 v2, 5, v2
v_and_b32 v3, 16, v0
v_add3_u32 v18, v2, v3, s36
s_movk_i32 s41, 0x80
v_mov_b32 v60, 1
s_waitcnt lgkmcnt(0)
""")
    tag_ready(17)
    for n in range(9):
        for r in range(4): a(f"v_and_b32 v{AO+4*n+r}, v{8+n}, v{4+r}")
    for n in range(9):
        a(f"s_waitcnt vmcnt({8-n})")
        mfma(56, AO + 4*n, WD + 4*n, n == 0)
    a(f"""
s_cmp_lt_u32 s3, 2
s_cbranch_scc0 L_np
s_lshl_b32 s36, s3, 10
v_lshl_add_u32 v2, v0, 4, s36
s_lshl_b32 s36, s3, 3
s_lshl_b32 s34, 0x00ff00ff, s36
v_xor_b32 v8, 0x400, v2
ds_write_b128 v2, v[56:59] offset:{PVP}
""")
    lds_inc(C_W, 1, 60)
    lds_spin("L_sw", C_W, 2, 1, 3)
    a(f"ds_read_b128 v[8:11], v8 offset:{PVP}\ns_waitcnt lgkmcnt(0)")
    for r in range(4): a(f"v_add_f32 v{56+r}, v{56+r}, v{8+r}")
    a("L_np:\ns_nop 5")
    for r in range(4): a(f"v_add_u32 v{56+r}, s41, v{56+r}")
    put_tag(56, 17)
    a("""
s_mov_b64 exec, s[34:35]
global_store_dwordx4 v18, v[56:59], s[30:31]
s_mov_b64 exec, -1
""")
    stamp(2)
    a(f"""
s_cmp_ge_u32 s3, 5
s_cbranch_scc1 L_qw
s_cmp_lt_u32 s3, 2
s_cselect_b32 s36, {C_W}, {C_P}
v_mov_b32 v2, s36
s_mov_b64 exec, 1
""")
    if gate: a(f"s_cbranch_scc0 L_ng\nds_add_u32 v1, v60 offset:{C_G}\nL_ng:")
    a(f"""
s_waitcnt vmcnt(0)
ds_add_u32 v2, v60
s_mov_b64 exec, -1
s_cmp_eq_u32 s3, 0
s_cbranch_scc0 L_nx
s_getreg_b32 s41, hwreg(HW_REG_XCC_ID, 0, 4)
s_and_b32 s36, s40, 0xfffffff0
s_or_b32 s41, s36, s41
s_lshl_b32 s36, s4, 7
s_add_u32 s36, s36, {X_OFF}
v_and_b32 v3, 31, v0
v_lshl_add_u32 v8, v3, 2, s36
s_mov_b32 s54, 0
L_xg:
global_load_dword v2, v8, s[30:31] sc1
s_add_u32 s54, s54, 1
s_waitcnt vmcnt(0)
v_xor_b32 v3, s40, v2
v_cmp_gt_u32 vcc, 16, v3
s_cmp_eq_u64 vcc, -1
s_cbranch_scc1 L_xg_ok
s_cmp_lt_u32 s54, {SPIN_MAX}
s_cbranch_scc1 L_xg
L_xg_ok:
v_cmp_eq_u32 vcc, s41, v2
s_cmp_eq_u64 vcc, -1
s_cselect_b32 s55, 1, 2
""")
    if force: a(f"s_mov_b32 s55, {force}")
    a(f"""
v_mov_b32 v2, s55
ds_write_b32 v1, v2 offset:{C_MODE}
L_nx:
""")
    lds_spin("L_sm0", C_MODE, 1, 1, 3, 4)
    republish("L_rp0")
    a("s_waitcnt vmcnt(0)")
    lds_inc(C_R, 1, 60)
    a(f"""
s_mov_b32 s51, s55
s_cmp_eq_u32 s55, 2
s_cselect_b32 s36, {B_DELTA}, 0
s_add_u32 s32, s32, s36
s_and_b32 s7, s5, 1
s_lshr_b32 s6, s5, 1
s_mul_i32 s6, s6, 9
s_lshl2_add_u32 s6, s7, s6
s_mul_i32 s36, s4, 144
s_add_u32 s36, s36, s6
s_mul_i32 s36, s36, 4608
s_add_u32 s56, s24, s36
s_addc_u32 s57, s25, 0
s_mul_i32 s58, s7, 2304
s_add_u32 s58, s58, 20736
s_mov_b32 s59, 0x20000
s_mul_i32 s37, s33, 18432
s_add_u32 s60, s16, s37
s_addc_u32 s61, s17, 0
s_movk_i32 s62, 0x4800
s_mov_b32 s63, 0x20000
v_lshrrev_b32 v8, 4, v0
v_mul_u32_u24 v2, 1152, v8
v_and_b32 v3, 15, v0
v_lshl_add_u32 v2, v3, 4, v2
s_lshl_b32 s37, s3, 8
v_add_u32 v10, s37, v2
v_lshl_add_u32 v3, v3, 4, s37
v_cmp_gt_u32 vcc, 1152, v3
v_mov_b32 v2, 0x10000000
v_cndmask_b32 v10, v2, v10, vcc
s_mov_b32 s34, vcc_lo
s_lshl_b32 s37, s7, 5
v_cmp_le_u32 vcc, s37, v0
v_lshlrev_b32 v8, 5, v8
v_cndmask_b32 v11, v2, v10, vcc
v_and_b32 v2, 14, v0
v_lshrrev_b32 v3, 4, v0
v_add_u32 v2, v2, v3
v_lshlrev_b32 v2, 10, v2
v_and_b32 v3, 1, v0
v_lshlrev_b32 v3, 4, v3
s_lshl_b32 s37, s3, 14
s_add_u32 s37, s37, s32
s_lshl_b32 s38, s5, 5
s_add_u32 s37, s37, s38
s_add_u32 s37, s37, {F1_OFF}
v_add3_u32 v13, v2, v3, s37
v_xor_b32 v17, {TAG2}, v17
s_lshl_b32 s37, s5, 10
s_add_u32 s37, s37, s32
s_add_u32 s37, s37, {O_OFF}
v_lshl_add_u32 v14, v0, 4, s37
s_lshr_b32 s37, s5, 3
s_lshl_b32 s37, s37, 7
s_add_u32 s37, s37, s32
s_add_u32 s37, s37, {L_OFF}
v_lshrrev_b32 v2, 2, v0
v_lshl_add_u32 v15, v2, 3, s37
v_and_b32 v3, 2, v0
v_lshlrev_b32 v3, 3, v3
s_and_b32 s37, s5, 16
v_xor_b32 v3, s37, v3
v_add_u32 v2, v2, v3
s_add_u32 s37, s32, {M_OFF}
v_lshl_add_u32 v16, v2, 4, s37
s_bitcmp1_b32 s5, 3
s_cselect_b64 s[42:43], -1, 0
s_movk_i32 s36, 4608
s_movk_i32 s37, 9216
s_movk_i32 s38, 13824
s_movk_i32 s39, 18432
""")
    lds_spin("L_skv", C_KV, 8, 1, 3)
    stamp(3)
    so = ["0", "s36", "s37", "s38", "s39"]
    for n in range(9):
        if n == s2a: lds_spin("L_s2b", C_PV, 9, 1, 3, 0)
        if n < 5: a(f"buffer_load_dwordx4 v[{WD+4*n}:{WD+4*n+3}], v{11 if n == 0 else 10}, s[56:59], {so[n]} offen{nt}")
        else: a(f"buffer_load_dwordx4 v[{WD+4*n}:{WD+4*n+3}], v10, s[60:63], {so[n-5]} offen{nt}")
    stamp(4)
    a(f"""
s_mov_b32 s54, 0
L_sh:
ds_read_b128 v[40:43], v8 offset:{HL}
ds_read_b32 v44, v8 offset:{HL+16}
s_add_u32 s54, s54, 1
s_waitcnt lgkmcnt(0)
v_cmp_eq_u32 vcc, 1, v40
s_cbranch_vccz L_sh_ok
s_sleep 1
s_cmp_lt_u32 s54, {SPIN_MAX}
s_cbranch_scc1 L_sh
L_sh_ok:
""")
    for n in range(5):
        for r in range(4): a(f"v_and_b32 v{20+4*n+r}, v{40+n}, v{4+r}")
    for n in range(5):
        a(f"s_waitcnt vmcnt({8-n})")
        mfma(56, 20 + 4*n, WD + 4*n, n == 0)
    if aat > 5: a(f"s_waitcnt vmcnt({9-aat})")
    if s2prio: a(f"s_setprio {s2prio}")
    S0, S1, CC = 100, 108, 40
    def oload(s):
        a(f"global_load_dwordx2 v[{s+4}:{s+5}], v15, s[30:31]{ldG}\nglobal_load_dwordx4 v[{s}:{s+3}], v14, s[30:31]{ldG}")
    def ocheck(s):
        a("s_waitcnt vmcnt(2)")
        a(f"""
v_perm_b32 v2, v{s+1}, v{s}, s49
v_perm_b32 v3, v{s+3}, v{s+2}, s50
v_cmp_eq_u32 s[52:53], s40, v{s+5}
v_or_b32 v2, v2, v3
v_cmp_eq_u32 vcc, s40, v2
""")
        for r in range(4): a(f"v_and_b32 v{CC+r}, s48, v{s+r}")
        a(f"v_mul_f32 v{CC+5}, v{s+4}, v9\ns_and_b64 vcc, vcc, s[52:53]")
        for r in range(4): a(f"v_mul_f32 v{CC+r}, v{CC+r}, v9")
        a("s_cmp_eq_u64 vcc, -1\ns_cbranch_scc1 L_og_ok")
    a(f"""
s_mov_b32 s54, 0
L_mg:
global_load_dwordx3 v[48:50], v16, s[30:31]{ldG}
""")
    oload(S0)
    a(f"""
s_add_u32 s54, s54, 1
s_waitcnt vmcnt(2)
v_cmp_eq_u32 vcc, s40, v50
v_cndmask_b32 v48, v48, v49, s[42:43]
s_cmp_eq_u64 vcc, -1
s_cbranch_scc1 L_mg_ok
s_waitcnt vmcnt(0)
s_cmp_lt_u32 s54, {SPIN_MAX}
s_cbranch_scc1 L_mg
L_mg_ok:
""")
    stamp(5)
    oload(S1)
    if fwait == 4: a(f"ds_write_b32 v1, v60 offset:{C_O}")
    a(f"""
v_mov_b32_dpp v48, v48 quad_perm:[0,0,0,0] {FULL}
v_max_f32_dpp v49, v48, v48 row_ror:4 {FULL}
v_max_f32_dpp v49, v49, v49 row_ror:8 {FULL}
""")
    allred_hi(49, 50, "v_max_f32")
    a("""
v_sub_f32 v48, v48, v49
v_mul_f32 v48, 0x3fb8aa3b, v48
v_exp_f32 v9, v48
L_og:
""")
    ocheck(S0); oload(S0); ocheck(S1); oload(S1)
    a(f"""
s_add_u32 s54, s54, 1
s_cmp_lt_u32 s54, {SPIN_MAX}
s_cbranch_scc1 L_og
L_og_ok:
""")
    stamp(6)
    a(f"""
v_add_f32_dpp v45, v45, v45 row_ror:4 {FULL}
v_permlane32_swap_b32 v40, v42
v_permlane32_swap_b32 v41, v43
v_add_f32_dpp v45, v45, v45 row_ror:8 {FULL}
v_add_f32 v40, v40, v42
v_add_f32 v41, v41, v43
v_mov_b32 v47, v45
; FTRIG3
v_permlane16_swap_b32 v40, v41
v_permlane16_swap_b32 v45, v47
v_add_f32 v40, v40, v41
v_add_f32 v45, v45, v47
v_mov_b32 v47, v45
v_add_f32_dpp v40, v40, v40 row_ror:4 {FULL}
v_permlane32_swap_b32 v45, v47
v_add_f32 v45, v45, v47
v_add_f32_dpp v40, v40, v40 row_ror:8 {FULL}
v_rcp_f32 v45, v45
v_mul_f32 v40, v40, v45
v_cvt_pk_bf16_f32 v40, v40, v40
""")
    for n in range(4):
        for r in range(4): a(f"v_and_b32_dpp v{20+4*n+r}, v40, v{4+r} quad_perm:[{n},{n},{n},{n}] {FULL}")
        if n >= 1: mfma(56, 20 + 4*(n-1), WD + 20 + 4*(n-1))
    a("s_cmp_eq_u32 s51, 2")
    mfma(56, 32, WD + 32)
    a("s_mov_b64 exec, s[34:35]")
    put_tag(56, 17)
    a(f"""
s_cbranch_scc1 L_ffar
global_store_dwordx4 v13, v[56:59], s[30:31]
L_fdone:
""")
    if fwait == 1: lds_inc(C_O, 1, 60)
    stamp(7)
    a("s_branch L_fin")

    a(f"""
L_qw:
s_sub_u32 s6, s3, 5
s_lshr_b32 s7, s5, 4
s_lshl1_add_u32 s7, s7, s6
s_lshl_b32 s7, s7, 12
s_add_u32 s7, s7, s32
s_add_u32 s7, s7, {PQ_OFF}
v_lshl_add_u32 v8, v0, 4, s7
v_and_b32 v2, 31, v0
v_lshrrev_b32 v3, 5, v0
v_lshl_add_u32 v2, v2, 1, v3
s_lshl_b32 s6, s6, 8
v_lshl_add_u32 v9, v2, 2, s6
v_mov_b32 v10, v8
""")
    lds_spin("L_sp", C_W, 4, 1, 3, 2)
    a("s_mov_b32 s54, 0")
    if slp1: a(f"s_sleep {slp1}")
    a("L_qg:")
    for n in range(4): a(f"global_load_dwordx4 v[{WD+4*n}:{WD+3+4*n}], v10, s[30:31] offset:{1024*n}{ldG}")
    a("s_add_u32 s54, s54, 1")
    for n in range(4):
        a(f"s_waitcnt vmcnt({3-n})")
        chk(WD + 4*n, 2, 3, n == 0)
    a(f"""
s_cmp_eq_u64 s[52:53], -1
s_cbranch_scc1 L_qg_ok
ds_read_b32 v3, v1 offset:{C_MODE}
s_waitcnt lgkmcnt(0)
v_readfirstlane_b32 s55, v3
""")
    republish("L_rp1")
    a(f"""
s_cmp_eq_u32 s55, 2
s_cselect_b32 s36, {B_DELTA}, 0
v_add_u32 v10, s36, v8
s_cmp_lt_u32 s54, {SPIN_MAX}
s_cbranch_scc1 L_qg
L_qg_ok:
""")
    stamp(3)
    unmask(WD, 16)
    for st in (4, 8):
        for b in range(WD, WD + 16, 2 * st):
            for r in range(4): a(f"v_add_f32 v{b+r}, v{b+r}, v{b+st+r}")
    a(f"""
v_permlane32_swap_b32 v{WD}, v{WD+2}
v_permlane32_swap_b32 v{WD+1}, v{WD+3}
v_add_f32 v{WD}, v{WD}, v{WD+2}
v_add_f32 v{WD+1}, v{WD+1}, v{WD+3}
v_cvt_pk_bf16_f32 v{WD}, v{WD}, v{WD+1}
ds_write_b32 v9, v{WD} offset:{QL}
""")
    lds_inc(C_Q, 1, 60)
    stamp(4)
    lds_spin("L_sm1", C_MODE, 1, 1, 3, 4)
    republish("L_rp2")
    a("s_waitcnt vmcnt(0)")
    lds_inc(C_R, 1, 60)
    a(f"""
s_cmp_eq_u32 s3, 5
s_cbranch_scc0 L_fin
s_mov_b32 s51, s55
s_lshl_b32 s36, s5, 4
s_add_u32 s36, s36, s32
s_add_u32 s36, s36, {M_OFF}
v_mov_b32 v2, s36
""")
    lds_spin("L_sr", C_R, 8, 1, 3, 2)
    lds_spin("L_sc", C_CM, 8, 1, 3, 2)
    a(f"""
ds_read_b64 v[8:9], v1 offset:{C_M}
v_mov_b32 v10, v17
v_mov_b32 v11, v17
s_mov_b64 exec, 1
s_cmp_eq_u32 s51, 2
s_waitcnt lgkmcnt(0)
s_cbranch_scc1 L_mfar
global_store_dwordx4 v2, v[8:11], s[30:31]
""")
    stamp(5)
    a("s_branch L_fin")

    a("""
L_ln:
s_mov_b32 s41, 0xffff0000
s_waitcnt vmcnt(0)
""")
    stamp(1)
    for r in range(8):
        a(f"v_lshlrev_b32 v{20+2*r}, 16, v{8+r}")
        a(f"v_and_b32 v{21+2*r}, s41, v{8+r}")
    def allred64(v, t):
        for sh in (1, 2, 4, 8): a(f"v_add_f32_dpp v{v}, v{v}, v{v} row_ror:{sh} {FULL}")
        allred_hi(v, t, "v_add_f32")
    a("v_add_f32 v2, v20, v21\nv_add_f32 v3, v22, v23")
    for r in range(2, 4): a(f"v_add_f32 v2, v2, v{20+2*r}\nv_add_f32 v3, v3, v{21+2*r}")
    a("s_mov_b64 exec, 0xff")
    for r in range(4, 8): a(f"v_add_f32 v2, v2, v{20+2*r}\nv_add_f32 v3, v3, v{21+2*r}")
    a("s_mov_b64 exec, -1")
    a("v_add_f32 v2, v2, v3")
    allred64(2, 3)
    a("v_mul_f32 v2, 0x3ae38e39, v2      ; mean")
    for r in range(16): a(f"v_sub_f32 v{40+r}, v{20+r}, v2")
    a("v_mul_f32 v3, v40, v40\nv_mul_f32 v16, v41, v41")
    for r in range(1, 4): a(f"v_fmac_f32 v3, v{40+2*r}, v{40+2*r}\nv_fmac_f32 v16, v{41+2*r}, v{41+2*r}")
    a("s_mov_b64 exec, 0xff")
    for r in range(4, 8): a(f"v_fmac_f32 v3, v{40+2*r}, v{40+2*r}\nv_fmac_f32 v16, v{41+2*r}, v{41+2*r}")
    a("s_mov_b64 exec, -1")
    a("v_add_f32 v3, v3, v16")
    allred64(3, 16)
    a("""
v_mul_f32 v3, 0x3ae38e39, v3      ; variance
v_cvt_pk_bf16_f32 v3, 0, v3
v_add_f32 v3, 0x3727c5ac, v3
v_cvt_pk_bf16_f32 v3, 0, v3
v_sqrt_f32 v3, v3
v_cvt_pk_bf16_f32 v2, 0, v2
v_cvt_pk_bf16_f32 v3, 0, v3
v_rcp_f32 v3, v3
""")
    for r in range(16): a(f"v_sub_f32 v{20+r}, v{20+r}, v2")
    for r in range(16): a(f"v_cvt_pk_bf16_f32 v{20+r}, 0, v{20+r}")
    for r in range(16): a(f"v_mul_f32 v{20+r}, v{20+r}, v3")
    for r in range(16): a(f"v_cvt_pk_bf16_f32 v{20+r}, v{20+r}, v{20+r}")
    a(f"""
v_lshlrev_b32 v2, 5, v0
v_mov_b32 v1, 0
v_mov_b32 v60, 1
ds_write_b128 v2, v[20:23] offset:{XN}
ds_write_b128 v2, v[24:27] offset:{XN+16}
s_mov_b64 exec, 0xff
ds_write_b128 v2, v[28:31] offset:{XN+2048}
ds_write_b128 v2, v[32:35] offset:{XN+2064}
s_mov_b64 exec, -1
s_waitcnt lgkmcnt(0)
s_barrier
""")
    stamp(2)
    tag_ready(17)
    a(f"""
s_getreg_b32 s41, hwreg(HW_REG_XCC_ID, 0, 4)
s_lshl_b32 s36, s4, 5
s_add_u32 s36, s36, s5
s_lshl_b32 s36, s36, 2
s_add_u32 s36, s36, {X_OFF}
v_mov_b32 v2, s36
s_and_b32 s36, s40, 0xfffffff0
s_or_b32 s36, s36, s41
v_mov_b32 v3, s36
s_mov_b64 exec, 1
global_store_dword v2, v3, s[30:31] sc1
s_mov_b64 exec, -1
""")
    consts()
    a(f"""
s_lshr_b32 s6, s5, 1
s_mul_i32 s6, s6, 9
s_and_b32 s7, s5, 1
s_lshl2_add_u32 s6, s7, s6
s_lshl_b32 s6, s6, 4
s_mul_i32 s32, s4, {GSZ}
s_add_u32 s6, s6, s32
s_add_u32 s6, s6, {PF_OFF}
v_and_b32 v2, 7, v0
v_min_u32 v3, 4, v2
v_lshrrev_b32 v8, 3, v0
v_mul_u32_u24 v8, 2304, v8
v_lshl_add_u32 v3, v3, 4, s6
v_add_u32 v13, v8, v3
s_mov_b32 s36, 0
v_lshrrev_b32 v3, 4, v0
v_lshlrev_b32 v3, 5, v3
v_lshl_add_u32 v12, v2, 2, v3
""")
    lds_spin("L_sp2", C_P, 3, 1, 3, 2)
    a("s_mov_b32 s54, 0")
    if slph: a(f"s_sleep {slph}")
    a(f"""
L_hg:
v_add_u32 v8, s36, v13
v_add_u32 v9, {8*2304}, v8
v_add_u32 v10, {16*2304}, v8
v_add_u32 v11, {24*2304}, v8
""")
    for n in range(4): a(f"global_load_dwordx4 v[{20+4*n}:{23+4*n}], v{8+n}, s[30:31]{ldG}")
    a("s_add_u32 s54, s54, 1")
    for n in range(4):
        a(f"s_waitcnt vmcnt({3-n})")
        chk(20 + 4*n, 2, 3, n == 0)
    a(f"""
s_cmp_eq_u64 s[52:53], -1
s_cbranch_scc1 L_hg_ok
ds_read_b32 v3, v1 offset:{C_MODE}
s_waitcnt lgkmcnt(0)
v_readfirstlane_b32 s55, v3
s_cmp_eq_u32 s55, 2
s_cselect_b32 s36, {B_DELTA}, 0
s_cmp_lt_u32 s54, {SPIN_MAX}
s_cbranch_scc1 L_hg
L_hg_ok:
""")
    unmask(20, 16)
    for r in range(4): a(f"v_add_f32 v{20+r}, v{20+r}, v{24+r}\nv_add_f32 v{28+r}, v{28+r}, v{32+r}")
    rscatter([20, 28])
    a(f"""
v_add_f32_dpp v20, v20, v20 row_ror:8 {FULL}
v_add_f32_dpp v28, v28, v28 row_ror:8 {FULL}
v_cvt_pk_bf16_f32 v20, 0, v20
v_cvt_pk_bf16_f32 v28, 0, v28
v_mul_f32 v21, v20, v20
v_mul_f32 v21, v21, v20
v_mov_b32 v22, 0x3d372713
v_fma_f32 v21, v21, v22, v20
v_mul_f32 v21, 0xc0135761, v21
v_exp_f32 v21, v21
v_add_f32 v21, 1.0, v21
v_rcp_f32 v21, v21
v_mul_f32 v21, v20, v21
v_cvt_pk_bf16_f32 v21, 0, v21
v_mul_f32 v21, v21, v28
v_cvt_pk_bf16_f32 v21, v21, v21
ds_write_b32 v12, v21 offset:{HL}
""")
    lds_inc(C_R, 1, 60)
    stamp(4)
    a("s_branch L_fin")

    KD, VD = 32, 64
    a(f"""
L_kv:
s_sub_u32 s3, s3, 8
s_cmp_eq_u32 s3, 0
s_cbranch_scc0 L_kv1
v_mov_b32 v3, 0xff800000
v_cmp_gt_u32 vcc, 2, v0
v_lshlrev_b32 v1, 2, v0
v_cndmask_b32 v3, 0, v3, vcc
v_cmp_gt_u32 vcc, 16, v0
v_cndmask_b32 v3, 1, v3, vcc
ds_write_b32 v1, v3
L_kv1:
s_lshl_b32 s6, s4, 5
s_add_u32 s6, s6, s5
s_lshr_b32 s7, s6, 4
s_lshl_b32 s7, s7, 24
s_lshl2_add_u32 s32, s3, s5
s_and_b32 s32, s32, 15
s_lshl_b32 s32, s32, 10
s_add_u32 s7, s7, s32
s_lshl_b32 s32, s3, 14
s_add_u32 s7, s7, s32
s_add_u32 s7, s7, 0xf00000
v_lshl_add_u32 v8, v0, 4, s7
s_mov_b32 s33, 0x20000
v_and_b32 v2, 48, v0
v_lshlrev_b32 v2, 2, v2
s_lshl_b32 s41, s3, 13
s_add_u32 s41, s41, {KL}
""")
    for n in range(1, 8): a(f"v_add_u32 v{8+n}, s33, v{7+n}")
    for n in range(8): a(f"v_xor_b32 v{16+n}, v{8+n}, v2")
    for n in range(8):
        if n & 3: a(f"v_xor_b32 v{16+n}, {16*(n&3)}, v{16+n}")
    a("""
s_mov_b32 m0, s41
v_mov_b32 v1, 0
s_waitcnt lgkmcnt(0)
s_barrier
""")
    def kvload(n):
        if kvs and kvs[n] is not None: a(f"s_waitcnt vmcnt({kvs[n]})")
        if n < 8:
            a(f"global_load_lds_dwordx4 v{16+n}, s[10:11]{nt}")
            if n < 7: a(f"s_add_u32 m0, s41, {1024*(n+1)}")
        else: a(f"global_load_dwordx4 v[{VD+4*(n-8)}:{VD+4*(n-8)+3}], v{n}, s[12:13]{nt}")
    n0 = 0
    while kvs[n0] is None:
        if gate and n0 == g0: lds_spin("L_sg", C_G, 2, 1, 3)
        kvload(n0); n0 += 1
    a(f"""
s_load_dword s40, s[30:31], {E_OFF}
v_mov_b32 v100, 1
""")
    masks(); consts()
    a(f"""
v_bfe_u32 v102, v0, 3, 1
v_and_b32 v2, 48, v0
v_lshl_add_u32 v101, v102, 8, v2
v_lshlrev_b32 v103, 2, v102
s_lshl_b32 s32, s3, 2
v_lshl_add_u32 v104, v102, 5, s32
v_and_b32 v2, 15, v0
v_lshlrev_b32 v2, 5, v2
v_and_b32 v3, 16, v0
v_add_u32 v2, v2, v3
v_and_b32 v3, 32, v0
v_lshl_add_u32 v2, v3, 4, v2
s_lshl_b32 s32, s3, 10
v_add_u32 v105, s32, v2
s_mul_i32 s43, s4, {GSZ}
s_and_b32 s32, s5, 16
s_lshl_b32 s33, s32, 10
s_and_b32 s34, s5, 15
s_lshl_b32 s35, s34, 6
s_add_u32 s33, s33, s35
s_add_u32 s33, s33, s43
s_add_u32 s33, s33, {O_OFF}
v_lshrrev_b32 v2, 2, v0
v_lshlrev_b32 v2, 10, v2
v_and_b32 v3, 3, v0
v_lshlrev_b32 v3, 4, v3
v_add3_u32 v106, v2, v3, s33
s_lshl_b32 s33, s32, 4
s_lshl3_add_u32 s33, s34, s33
s_add_u32 s33, s33, s43
s_add_u32 s33, s33, {L_OFF}
v_lshl_add_u32 v107, v0, 7, s33
v_and_b32 v2, 15, v0
v_lshrrev_b32 v3, 4, v0
v_xor_b32 v3, v3, v2
v_lshlrev_b32 v3, 4, v3
v_and_b32 v96, 3, v0
v_lshl_add_u32 v3, v96, 10, v3
v_and_b32 v2, 12, v0
v_lshl_add_u32 v3, v2, 6, v3
v_add_u32 v96, s41, v3
v_xor_b32 v97, 64, v96
v_xor_b32 v98, 0x80, v96
v_xor_b32 v99, 0xc0, v96
s_mov_b32 s34, 0xff00ff00
s_mov_b32 s35, 0xff00ff00
s_mov_b32 s36, 0x01010101
s_mov_b32 s37, 0x01010101
s_mov_b32 s38, 0x3db504f3
s_mov_b32 s39, 0x3fb8aa3b
""")
    for n in range(n0, 12): kvload(n)
    a("s_waitcnt vmcnt(4)")
    for tl in range(2):
        for st in range(4): a(f"ds_read_b128 v[{KD+16*tl+4*st}:{KD+16*tl+4*st+3}], v{96+st} offset:{4096*tl}")
    a(f"""
s_mov_b32 s54, 0
s_mov_b32 s42, 0
L_sq0:
ds_read_b32 v3, v1 offset:{C_Q}
s_add_u32 s54, s54, 1
s_waitcnt lgkmcnt(0)
v_readfirstlane_b32 s55, v3
s_cmp_ge_u32 s55, 2
s_cbranch_scc1 L_sq_ok
s_sleep 1
s_cmp_lt_u32 s54, {qspin}
s_cbranch_scc1 L_sq0
s_mov_b32 s42, 1
""")
    for n in range(12, 16): kvload(n)
    lds_inc(C_KV, 1, 100)
    stamp(1)
    lds_spin("L_sq", C_Q, 2, 1, 3)
    stamp(2)
    for st in range(4): a(f"ds_read_b128 v[{112+4*st}:{115+4*st}], v101 offset:{QL+64*st}")
    tag_ready(108)
    a("s_waitcnt lgkmcnt(0)")
    for st in range(4):
        for tl in range(2): mfma(16 + 4*tl, KD + 16*tl + 4*st, 112 + 4*st, st == 0)
    for n in range(8): a(f"v_cvt_pk_bf16_f32 v{16+n}, 0, v{16+n}")
    for n in range(8): a(f"v_mul_f32 v{16+n}, s38, v{16+n}")
    for n in range(8): a(f"v_cvt_pk_bf16_f32 v{16+n}, 0, v{16+n}")
    a(f"""
v_max3_f32 v24, v16, v17, v18
v_max3_f32 v25, v19, v20, v21
v_max3_f32 v24, v24, v22, v23
v_max_f32 v24, v24, v25
s_mov_b64 exec, s[36:37]
ds_max_f32 v103, v24 offset:{C_M}
""")
    lds_inc(C_CM, 1, 100)
    a("s_cmp_eq_u32 s42, 0\ns_cbranch_scc0 L_vdone")
    for n in range(12, 16): kvload(n)
    lds_inc(C_KV, 1, 100)
    stamp(1)
    a(f"""
L_vdone:
s_mov_b32 s54, 0
L_sm:
ds_read_b128 v[28:31], v1 offset:{C_M}
s_add_u32 s54, s54, 1
s_waitcnt lgkmcnt(0)
v_readfirstlane_b32 s55, v30
s_cmp_ge_u32 s55, 8
s_cbranch_scc1 L_sm_ok
s_sleep 1
s_cmp_lt_u32 s54, {SPIN_MAX}
s_cbranch_scc1 L_sm
L_sm_ok:
""")
    stamp(3)
    a("v_cndmask_b32 v24, v28, v29, s[34:35]\nv_mul_f32 v24, s39, v24")
    for n in range(8): a(f"v_fma_f32 v{16+n}, v{16+n}, s39, -v24")
    for n in range(8): a(f"v_exp_f32 v{16+n}, v{16+n}")
    a("""
v_add_f32 v24, v16, v17
v_add_f32 v25, v18, v19
v_add_f32 v26, v20, v21
v_add_f32 v27, v22, v23
""")
    for n in range(8): a(f"v_cvt_pk_bf16_f32 v{16+n}, v{16+n}, v{16+n}")
    a("v_add_f32 v24, v24, v25\nv_add_f32 v26, v26, v27")
    for n in range(8):
        for r in range(4): a(f"v_and_b32 v{KD+4*n+r}, v{16+n}, v{4+r}")
    a("v_add_f32 v24, v24, v26")
    allred_hi(24, 25, "v_add_f32")
    a(f"ds_write_b32 v104, v24 offset:{LSL}")
    lds_spin("L_sm2", C_MODE, 1, 1, 3, 2)
    a(f"""
s_mov_b32 s51, s55
s_cmp_eq_u32 s55, 2
s_cselect_b32 s32, {B_DELTA}, 0
v_add_u32 v106, s32, v106
v_add_u32 v107, s32, v107
v_lshlrev_b32 v3, 4, v0
v_and_b32 v101, 1, v0
v_lshlrev_b32 v102, 5, v101
v_mov_b32 v25, v108
""")
    stamp(4)
    for n in range(8):
        a(f"s_waitcnt vmcnt({7-n})")
        mfma(96, KD + 4*n, VD + 4*n, n == 0)
    stamp(5)
    a(f"""
ds_write_b128 v105, v[96:99] offset:{PVP}
s_mov_b64 exec, 1
ds_add_rtn_u32 v2, v1, v100 offset:{C_PV}
s_mov_b64 exec, -1
s_waitcnt lgkmcnt(0)
v_readfirstlane_b32 s55, v2
s_cmp_eq_u32 s55, 7
s_cbranch_scc0 L_notlast
ds_read_b128 v[16:19], v102 offset:{LSL}
ds_read_b128 v[20:23], v102 offset:{LSL+16}
""")
    for n in range(8): a(f"ds_read_b128 v[{32+4*n}:{35+4*n}], v3 offset:{PVP+1024*n}")
    a(f"""
s_waitcnt lgkmcnt({0 if stamps else 8})
v_add_f32 v16, v16, v17
v_add_f32 v18, v18, v19
v_add_f32 v20, v20, v21
v_add_f32 v22, v22, v23
v_add_f32 v16, v16, v18
v_add_f32 v20, v20, v22
v_add_f32 v24, v16, v20
""")
    w = [6, 4, 2, 0]
    def pk(d, x, y):
        a(f"v_pk_add_f32 v[{d}:{d+1}], v[{x}:{x+1}], v[{y}:{y+1}]\nv_pk_add_f32 v[{d+2}:{d+3}], v[{x+2}:{x+3}], v[{y+2}:{y+3}]")
    for p in range(4):
        a(f"s_waitcnt lgkmcnt({0 if stamps else w[p]})")
        if etrig and p == 3: a(f"v_mov_b32 v2, 9\nds_write_b32 v1, v2 offset:{C_PV}")
        pk(32 + 8*p, 32 + 8*p, 36 + 8*p)
        if p in (1, 3): pk(32 + 8*(p-1), 32 + 8*(p-1), 32 + 8*p)
    pk(32, 32, 48)
    a("s_cmp_eq_u32 s51, 2")
    put_tag(32, 108)
    a(f"""
s_cbranch_scc1 L_ofar
global_store_dwordx4 v106, v[32:35], s[30:31]
s_mov_b64 exec, 3
global_store_dwordx2 v107, v[24:25], s[30:31]
L_odone:
""")
    if (s2a < 9 or fwait == 2) and not etrig: lds_inc(C_PV, 1, 100)
    else: a("s_mov_b64 exec, -1")
    a("L_notlast:")
    stamp(6)
    a(f"""
s_lshl_b32 s33, s3, 5
s_add_u32 s33, s33, s5
s_cmp_ge_u32 s33, 72
s_cbranch_scc1 L_fin
s_lshl_b32 s34, s33, 10
s_add_u32 s34, s34, s43
s_add_u32 s34, s34, s32
s_add_u32 s34, s34, {F1_OFF}
v_and_b32 v2, 7, v0
v_lshlrev_b32 v2, 5, v2
v_and_b32 v3, 48, v0
v_lshl_add_u32 v2, v3, 4, v2
v_and_b32 v3, 8, v0
v_lshlrev_b32 v11, 1, v3
v_add3_u32 v8, v2, v11, s34
s_lshl_b32 s34, s33, 9
s_add_u32 s34, s34, {F2_OFF}
v_lshl_add_u32 v9, v0, 3, s34
v_lshrrev_b32 v3, 4, v0
v_lshl_add_u32 v2, v3, 1, v11
s_lshr_b32 s34, s33, 1
s_lshl_b32 s34, s34, 5
s_and_b32 s35, s33, 1
s_lshl3_add_u32 s34, s35, s34
v_add_u32 v10, s34, v2
global_load_ushort v11, v10, s[8:9]
s_lshl_b32 s34, s36, s4
s_mov_b32 s35, s34
v_mov_b32 v12, 0
v_mov_b32 v13, 0
s_mov_b64 exec, s[34:35]
global_store_dwordx2 v9, v[12:13], s[30:31] sc1
s_mov_b64 exec, -1
s_xor_b32 s41, s40, {TAG2}
v_cndmask_b32 v15, 0, v108, s[34:35]
""")
    if fwait in (1, 3, 4): lds_spin("L_sf", C_O, 1, 1, 3, fslp)
    if fwait == 2: lds_spin("L_sf", C_PV, 9, 1, 3, 1)
    a(f"""
s_mov_b32 s54, 0
global_load_dwordx4 v[64:67], v8, s[30:31]{ldF}
L_fg:
global_load_dwordx4 v[68:71], v8, s[30:31]{ldF}
s_add_u32 s54, s54, 1
s_waitcnt vmcnt(1)
""")
    chk(64, 2, 3, None, "s41")
    for r in range(4): a(f"v_and_b32 v{72+r}, s48, v{64+r}")
    a(f"""
s_cmp_eq_u64 vcc, -1
s_cbranch_scc1 L_fg_ok
global_load_dwordx4 v[64:67], v8, s[30:31]{ldF}
s_waitcnt vmcnt(1)
""")
    chk(68, 2, 3, None, "s41")
    for r in range(4): a(f"v_and_b32 v{72+r}, s48, v{68+r}")
    a(f"""
s_cmp_eq_u64 vcc, -1
s_cbranch_scc1 L_fg_ok
s_cmp_lt_u32 s54, {SPIN_MAX}
s_cbranch_scc1 L_fg
L_fg_ok:
""")
    stamp(7)
    rscatter([72])
    a(f"""
v_add_f32_dpp v72, v72, v72 row_half_mirror {FULL}
v_add_f32_dpp v72, v72, v72 quad_perm:[1,0,3,2] {FULL}
v_add_f32_dpp v72, v72, v72 quad_perm:[2,3,0,1] {FULL}
v_cndmask_b32 v14, 0, v72, s[34:35]
global_atomic_add_x2 v[12:13], v9, v[14:15], s[30:31] sc0 sc1
v_lshlrev_b32 v11, 16, v11
s_waitcnt vmcnt(0)
v_cmp_eq_u32 vcc, s40, v13
v_cndmask_b32 v12, v12, v72, s[34:35]
s_or_b64 s[52:53], vcc, s[34:35]
s_lshr_b64 s[56:57], s[52:53], 1
v_add_f32_dpp v12, v12, v12 row_half_mirror {FULL}
s_and_b64 s[52:53], s[52:53], s[56:57]
s_lshr_b64 s[56:57], s[52:53], 2
v_add_f32_dpp v12, v12, v12 quad_perm:[1,0,3,2] {FULL}
s_and_b64 s[52:53], s[52:53], s[56:57]
s_lshr_b64 s[56:57], s[52:53], 4
v_add_f32_dpp v12, v12, v12 quad_perm:[2,3,0,1] {FULL}
s_and_b64 s[52:53], s[52:53], s[56:57]
v_add_f32 v12, v12, v11
v_cvt_pk_bf16_f32 v12, v12, v12
s_and_b64 exec, s[52:53], s[36:37]
s_cbranch_execz L_fin
global_store_short v10, v12, s[26:27]
s_cmp_eq_u32 s33, 0
s_cbranch_scc0 L_fin
s_and_b64 exec, exec, 1
s_cbranch_execz L_fin
global_store_dword v1, v108, s[30:31] offset:{E_OFF}
""")
    a("L_fin:")
    if stamps:
        a(f"""
s_mov_b64 exec, -1
s_memrealtime s[80:81]
s_getreg_b32 s82, hwreg(HW_REG_XCC_ID)
s_waitcnt lgkmcnt(0)
""")
        if stamps == 2: a("s_cmp_eq_u32 s84, 8\ns_cbranch_scc0 L_end")
        else: a("s_sleep 100\ns_sleep 100\ns_sleep 100")
        a(f"""
s_lshl_b32 s6, s2, 4
s_add_u32 s6, s6, s84
s_lshl_b32 s6, s6, 6
s_add_u32 s6, s6, {ST_OFF}
v_mov_b32 v1, s6
""")
        for i in range(9): a(f"v_mov_b32 v{16+i}, s{64+2*i}")
        a("""
v_mov_b32 v25, s82
v_mov_b32 v26, s54
v_mov_b32 v27, 0
s_mov_b64 exec, 1
global_store_dwordx4 v1, v[16:19], s[30:31]
global_store_dwordx4 v1, v[20:23], s[30:31] offset:16
global_store_dwordx4 v1, v[24:27], s[30:31] offset:32
""")
    a(f"""
s_endpgm
L_ofar:
global_store_dwordx4 v106, v[32:35], s[30:31] sc1
s_mov_b64 exec, 3
global_store_dwordx2 v107, v[24:25], s[30:31] sc1
s_branch L_odone
L_ffar:
global_store_dwordx4 v13, v[56:59], s[30:31] sc1
s_branch L_fdone
L_mfar:
v_add_u32 v2, {B_DELTA}, v2
global_store_dwordx4 v2, v[8:11], s[30:31] sc1
s_branch L_fin
L_end:
s_endpgm
.fill (L_start + 8704 - .) / 4, 4, 0xbf810000
""")
    body = a.text()
    body = body.replace("    ; FTRIG3\n", f"    ds_write_b32 v1, v60 offset:{C_O}\n" if fwait == 3 else "")
    if stamps:
        pre = "".join(f"    s_mov_b64 s[{64+2*i}:{65+2*i}], 0\n" for i in range(1, 8))
        pre += "    s_add_u32 s84, s3, 7\n    s_and_b32 s84, s84, 7\n    s_cmp_gt_u32 s3, 7\n    s_cselect_b32 s84, s3, s84\n"
        body = body.replace("    v_and_b32 v0, 63, v0\n", "    v_and_b32 v0, 63, v0\n" + pre, 1)
        body = body.replace("L_start + 8704", "L_start + 9216")
    body = hz.fix(body)
    hdr = open(os.path.join(os.path.dirname(os.path.abspath(__file__)), "header.txt")).read()
    return f"""{hdr}; @launch grid=(256,1,1) block=(1024,1,1) lds={LDS_BYTES}
.amdgcn_target "amdgcn-amd-amdhsa--gfx950"
.text
.globl {NAME}_kernel
.p2align 8
.type {NAME}_kernel,@function
{NAME}_kernel:
{body}
.section .rodata,"a"
.p2align 6
.amdhsa_kernel {NAME}_kernel
  .amdhsa_next_free_vgpr 128
  .amdhsa_next_free_sgpr 90
  .amdhsa_accum_offset 128
  .amdhsa_group_segment_fixed_size 0
  .amdhsa_kernarg_size 96
  .amdhsa_user_sgpr_count 2
  .amdhsa_user_sgpr_kernarg_segment_ptr 1
  .amdhsa_system_sgpr_workgroup_id_x 1
.end_amdhsa_kernel
"""

if __name__ == "__main__":
    import ast
    out = sys.argv[1]
    kw = {}
    for x in sys.argv[2:]:
        k, v = x.split("=", 1)
        try: v = ast.literal_eval(v)
        except Exception: v = (" " + v.replace("+", " ")) if v else ""
        kw[k] = v
    open(out, "w").write(gen(**kw))
```

```python
import sys, re
src = open(sys.argv[1]).read()
mask = int(sys.argv[3], 0); idx = int(sys.argv[4]); mode = sys.argv[5]; mult = int(sys.argv[6]) if len(sys.argv) > 6 else 8
a0 = src.index("L_fin:\n"); a1 = src.index("    s_endpgm\n", a0)
cnt = 256 * bin(mask).count("1")
agg = (f"    v_mov_b32 v2, s{64+2*idx}\n    global_atomic_umax v1, v2, s[28:29] sc1\n" if mode == "max" else
       f"    s_sub_u32 s6, s{64+2*idx}, s64\n    v_mov_b32 v2, s6\n    global_atomic_add v1, v2, s[28:29] sc1\n")
val = ("    s_not_b32 s7, s7\n    s_sub_u32 s6, s6, s7\n    s_mul_i32 s6, s6, %d\n" % mult if mode == "max" else
       "    s_mul_i32 s6, s6, %d\n    s_mul_hi_u32 s6, s6, %d\n" % (mult, (1 << 32) // cnt))
fin = f"""L_fin:
    s_mov_b64 exec, 1
    s_memrealtime s[80:81]
    v_mov_b32 v1, 0
L_dw:
    s_sleep 8
    s_memrealtime s[82:83]
    s_waitcnt lgkmcnt(0)
    s_sub_u32 s7, s82, s64
    s_cmp_lt_u32 s7, 1600
    s_cbranch_scc1 L_dw
    s_lshr_b32 s6, {mask}, s84
    s_and_b32 s6, s6, 1
    s_cbranch_scc0 L_d1
{agg}L_d1:
    s_cmp_eq_u32 s84, 7
    s_cbranch_scc0 L_end
    s_cmp_lt_u32 s2, 8
    s_cbranch_scc0 L_end
    s_not_b32 s6, s64
    v_mov_b32 v2, s6
    global_atomic_umax v1, v2, s[28:29] offset:128 sc1
    s_cmp_eq_u32 s2, 0
    s_cbranch_scc0 L_end
L_dg0:
    s_memrealtime s[82:83]
    s_waitcnt lgkmcnt(0)
    s_sub_u32 s7, s82, s64
    s_cmp_lt_u32 s7, 8000
    s_cbranch_scc1 L_dg0
    global_load_dword v2, v1, s[28:29] sc1
    global_load_dword v3, v1, s[28:29] offset:128 sc1
    s_waitcnt vmcnt(0)
    v_readfirstlane_b32 s6, v2
    v_readfirstlane_b32 s7, v3
{val}    s_min_u32 s6, s6, 30000
    v_mov_b32 v2, s6
    global_store_dword v1, v2, s[28:29] offset:4
    s_add_u32 s6, s6, 10000
L_dg:
    s_memrealtime s[82:83]
    s_waitcnt lgkmcnt(0)
    s_sub_u32 s7, s82, s64
    s_cmp_lt_u32 s7, s6
    s_cbranch_scc1 L_dg
"""
src = src[:a0] + fin + src[a1:]
src = src.replace("L_start + 9216", "L_start + 9728")
open(sys.argv[2], "w").write(src)
```

```python
import sys, re
src = open(sys.argv[1]).read(); mult = int(sys.argv[3]) if len(sys.argv) > 3 else 8
assert "s_memrealtime" not in src
src = src.replace("L_start:\n", "L_start:\n    s_memrealtime s[86:87]\n", 1)
src = src.replace("    v_and_b32 v0, 63, v0\n", "    v_and_b32 v0, 63, v0\n    s_mov_b32 s84, s3\n    s_mov_b32 s85, 0\n", 1)
src, n = re.subn(r"(    global_store_short [^\n]*\n)", r"\1    s_mov_b32 s85, 1\n", src); assert n == 1
fin = f"""L_fin:
    s_mov_b64 exec, 1
    s_memrealtime s[80:81]
    v_mov_b32 v1, 0
    s_waitcnt lgkmcnt(0)
    s_cmp_eq_u32 s85, 1
    s_cbranch_scc0 L_d1
    v_mov_b32 v2, s80
    global_atomic_umax v1, v2, s[28:29] sc1
L_d1:
    s_cmp_eq_u32 s84, 1
    s_cbranch_scc0 L_end
    s_cmp_lt_u32 s2, 8
    s_cbranch_scc0 L_end
    s_not_b32 s6, s86
    v_mov_b32 v2, s6
    global_atomic_umax v1, v2, s[28:29] offset:128 sc1
    s_cmp_eq_u32 s2, 0
    s_cbranch_scc0 L_end
L_dg0:
    s_memrealtime s[82:83]
    s_waitcnt lgkmcnt(0)
    s_sub_u32 s7, s82, s86
    s_cmp_lt_u32 s7, 3000
    s_cbranch_scc1 L_dg0
    global_load_dword v2, v1, s[28:29] sc1
    global_load_dword v3, v1, s[28:29] offset:128 sc1
    s_waitcnt vmcnt(0)
    v_readfirstlane_b32 s6, v2
    v_readfirstlane_b32 s7, v3
    s_not_b32 s7, s7
    s_sub_u32 s6, s6, s7
    s_min_u32 s6, s6, 3000
    v_mov_b32 v2, s6
    global_store_dword v1, v2, s[28:29] offset:4
    s_mul_i32 s6, s6, {mult}
L_dg:
    s_memrealtime s[82:83]
    s_waitcnt lgkmcnt(0)
    s_sub_u32 s7, s82, s86
    s_cmp_lt_u32 s7, s6
    s_cbranch_scc1 L_dg
"""
assert src.count("L_fin:\n") == 1
src = src.replace("L_fin:\n", fin)
open(sys.argv[2], "w").write(src)
```
